```python
import torch

def _softmax(x, axis=-1):
    return torch.softmax(x, dim=axis)

def _gelu(x):
    return torch.nn.functional.gelu(x, approximate='tanh')

def _silu(x):
    return torch.nn.functional.silu(x)

def _sigmoid(x):
    return torch.sigmoid(x)

def _layernorm(x, axis=-1, eps=1e-05):
    m = x.mean(dim=axis, keepdim=True)
    v = x.var(dim=axis, keepdim=True, unbiased=False)
    return (x - m) / torch.sqrt(v + eps)

def _scatter_add(tgt, idx, src, axis=0):
    return tgt.clone().index_add_(axis, idx, src)

def _segment_sum(src, seg, n):
    out = torch.zeros((n,) + src.shape[1:], dtype=src.dtype)
    return out.index_add_(0, seg, src)

def _pad(x, pw):
    flat = tuple((v for pair in reversed(pw) for v in pair))
    return torch.nn.functional.pad(x, flat)
kernel_name = 'concat_heads__linear_kernel_hedgehog__memory_aug_recurrent_mem_tr__prompt'

def setup_inputs():

    _w = lambda a: (lambda t: t.to(torch.bfloat16) if t.is_floating_point() else t)(torch.as_tensor(a))

    def _A_setup():
        B, S, D, H = (1, 2048, 512, 32)
        Dh = D // H
        return {'x': _w((lambda *s: torch.randn(*s, dtype=torch.bfloat16) * 0.8)(B, S, D)), 'wqkv': _w((lambda *s: torch.randn(*s, dtype=torch.bfloat16) * 0.8)(D, 3 * D)), 'w_phi': _w((lambda *s: torch.randn(*s, dtype=torch.bfloat16) * 0.8)(H, Dh, Dh) * Dh ** (-0.5)), 'wo': _w((lambda *s: torch.randn(*s, dtype=torch.bfloat16) * 0.05)(D, D))}
    _A_in = _A_setup()

    def _B_setup():
        B, S, Dm = (1, 2048, 512)
        H, Dh = (32, 128)
        M, seg = (8, 32)
        seg = min(seg, S)
        S = S // seg * seg
        return {'x': _w((lambda *s: torch.randn(*s, dtype=torch.bfloat16) * 0.05)(B, S, Dm)), 'mem0': _w((lambda *s: torch.randn(*s, dtype=torch.bfloat16) * 1.6)(B, M, Dm)), 'Wq': _w((lambda *s: torch.randn(*s, dtype=torch.bfloat16) * 0.8)(Dm, H, Dh) * Dm ** (-0.5)), 'Wk': _w((lambda *s: torch.randn(*s, dtype=torch.bfloat16) * 0.8)(Dm, H, Dh) * Dm ** (-0.5)), 'Wv': _w((lambda *s: torch.randn(*s, dtype=torch.bfloat16) * 1.6)(Dm, H, Dh) * Dm ** (-0.5)), 'Wo': _w((lambda *s: torch.randn(*s, dtype=torch.bfloat16) * 1.6)(H, Dh, Dm) * (H * Dh) ** (-0.5)), 'seg_len': seg}
    _B_in = _B_setup()
    return {'A_x': _A_in['x'], 'A_wqkv': _A_in['wqkv'], 'A_w_phi': _A_in['w_phi'], 'A_wo': _A_in['wo'], 'B_x': _B_in['x'], 'B_mem0': _B_in['mem0'], 'B_Wq': _B_in['Wq'], 'B_Wk': _B_in['Wk'], 'B_Wv': _B_in['Wv'], 'B_Wo': _B_in['Wo'], 'B_seg_len': _B_in['seg_len']}

def reference(A_x, A_wqkv, A_w_phi, A_wo, B_x, B_mem0, B_Wq, B_Wk, B_Wv, B_Wo, B_seg_len):

    def _A_ref(x, wqkv, w_phi, wo):
        B, S, D = x.shape
        H = 32
        Dh = D // H
        qkv = (lambda x, *d: x.permute(*d))((x @ wqkv).reshape(B, S, 3, H, Dh), 2, 0, 3, 1, 4)
        q, k, v = (qkv[0], qkv[1], qkv[2])
        pq = torch.einsum('bhsd,hdf->bhsf', q, w_phi)
        pk = torch.einsum('bhsd,hdf->bhsf', k, w_phi)
        phi_q = torch.concatenate([_softmax(pq, axis=-1), _softmax(-pq, axis=-1)], axis=-1)
        phi_k = torch.concatenate([_softmax(pk, axis=-1), _softmax(-pk, axis=-1)], axis=-1)
        kv = torch.einsum('bhsf,bhsd->bhfd', phi_k, v)
        z = torch.einsum('bhsf->bhf', phi_k)
        num = torch.einsum('bhqf,bhfd->bhqd', phi_q, kv)
        den = torch.einsum('bhqf,bhf->bhq', phi_q, z)[..., None] + 1e-06
        o = num / den
        return (lambda x, *d: x.permute(*d))(o, 0, 2, 1, 3).reshape(B, S, D) @ wo

    def _B_ref(x, mem0, Wq, Wk, Wv, Wo, seg_len):
        B, S, Dm = x.shape
        H, Dh = (Wq.shape[1], Wq.shape[2])
        M = mem0.shape[1]
        scale = Dh ** (-0.5)
        n_seg = S // seg_len
        L = M + seg_len
        idx = torch.arange(L)
        mask = (idx[:, None] < M) | (idx[:, None] >= idx[None, :])
        mem = mem0
        outs = []
        for s in range(n_seg):
            xs = x[:, s * seg_len:(s + 1) * seg_len, :].clone()
            h = torch.concatenate([mem, xs], axis=1)
            q = torch.einsum('btd,dhe->bhte', h, Wq)
            k = torch.einsum('btd,dhe->bhte', h, Wk)
            v = torch.einsum('btd,dhe->bhte', h, Wv)
            scores = torch.einsum('bhqe,bhke->bhqk', q, k) * scale
            scores = torch.where(mask[None, None], scores, -1000000000.0)
            p = _softmax(scores, axis=-1)
            o = torch.einsum('bhqk,bhke->bhqe', p, v)
            o = torch.einsum('bhte,hed->btd', o, Wo)
            mem = o[:, :M, :].clone()
            outs.append(o[:, M:, :])
        return torch.concatenate(outs, axis=1)
    a = _A_ref(A_x, A_wqkv, A_w_phi, A_wo)
    b = _B_ref(B_x, B_mem0, B_Wq, B_Wk, B_Wv, B_Wo, B_seg_len)
    return torch.concatenate([a, b], axis=-1)
```

```python
import re

class Asm:
    def __init__(self):
        self.lines = []
        self.uid = 0
    def __call__(self, s):
        for ln in s.split("\n"):
            ln = ln.strip()
            if ln:
                self.lines.append(ln)
    def label(self, name):
        self.lines.append(name + ":")
    def newlabel(self, base):
        self.uid += 1
        return f"L_{base}_{self.uid}"
    def text(self):
        out = []
        for ln in self.lines:
            if ln.endswith(":") or ln.startswith("."):
                out.append(ln)
            else:
                out.append("    " + ln)
        return "\n".join(out) + "\n"

def v(n, cnt=1):
    return f"v{n}" if cnt == 1 else f"v[{n}:{n+cnt-1}]"
def a(n, cnt=1):
    return f"a{n}" if cnt == 1 else f"a[{n}:{n+cnt-1}]"
def s(n, cnt=1):
    return f"s{n}" if cnt == 1 else f"s[{n}:{n+cnt-1}]"
def r(n, cnt=1):
    if n >= 256:
        return a(n - 256, cnt)
    assert n + cnt <= 256
    return v(n, cnt)

_REG = re.compile(r"^(-?\|?)([vas])(?:(\d+)|\[(\d+):(\d+)\])\|?$")
def regs_of(tok):
    tok = tok.strip()
    if tok in ("vcc",): return {("s", 106), ("s", 107)}
    if tok == "exec": return {("s", 126), ("s", 127)}
    if tok == "m0": return {("s", 124)}
    m = re.match(r"^(?:neg|abs)\((.*)\)$", tok)
    if m: tok = m.group(1)
    m = _REG.match(tok)
    if not m: return set()
    f = m.group(2)
    lo = int(m.group(3) if m.group(3) is not None else m.group(4))
    hi = int(m.group(3) if m.group(3) is not None else m.group(5))
    return {(f, i) for i in range(lo, hi + 1)}

TRANS = ("v_exp_f32", "v_log_f32", "v_rcp_f32", "v_rsq_f32", "v_sqrt_f32")

def parse(ln):
    ln = ln.split(";")[0].strip()
    parts = ln.split(None, 1)
    op = parts[0]
    ops = []
    mods = ""
    if len(parts) > 1:
        toks = [t.strip() for t in parts[1].split(",")]
        joined = []
        depth = 0
        cur = ""
        for ch in parts[1]:
            if ch == "[": depth += 1
            if ch == "]": depth -= 1
            if ch == "," and depth == 0:
                joined.append(cur.strip()); cur = ""
            else:
                cur += ch
        joined.append(cur.strip())
        last = joined[-1].split()
        ops = joined[:-1] + [last[0]]
        mods = " ".join(last[1:])
    return op, ops, mods

def classify(op, ops, mods):
    R = lambda lst: set().union(*[regs_of(t) for t in lst]) if lst else set()
    if op.startswith("v_smfmac"):
        return "mfma", R(ops[:1]), dict(ab=R(ops[1:4]), c=R(ops[:1]))
    if op.startswith("v_mfma"):
        return "mfma", R(ops[:1]), dict(ab=R(ops[1:3]), c=R(ops[3:4]))
    if op.startswith("v_permlane") and "swap" in op:
        return "valu", R(ops[:2]), R(ops[:2])
    if op.startswith("v_cmp"):
        return "valu", R(ops[:1]), R(ops[1:])
    if op in ("v_readfirstlane_b32", "v_readlane_b32"):
        return "valu", R(ops[:1]), R(ops[1:])
    if op.startswith("v_add_co") or op.startswith("v_addc_co"):
        return "valu", R(ops[:2]), R(ops[2:])
    if op.startswith("v_fmac") or op.startswith("v_pk_fmac"):
        return "valu", R(ops[:1]), R(ops)
    if op.startswith("v_"):
        return "valu", R(ops[:1]), R(ops[1:])
    if op.startswith("ds_read") or op.startswith("ds_bpermute") or op.startswith("ds_swizzle"):
        return "ds", R(ops[:1]), R(ops[1:])
    if op.startswith("ds_"):
        return "ds", set(), R(ops)
    if op.startswith("buffer_load") or op.startswith("global_load"):
        if "lds" in mods.split() or "_lds_" in op:
            return "vmem", set(), R(ops) | {("s", 124)}
        w = R(ops[:1])
        rd = R(ops[1:])
        if "d16" in op: rd |= w
        return "vmem", w, rd
    if op.startswith("buffer_atomic") or op.startswith("global_atomic"):
        w = set()
        if "sc0" in mods.split():
            w = R(ops[:1])
        return "vmem", w, R(ops)
    if op.startswith("buffer_store") or op.startswith("global_store"):
        return "vmem", set(), R(ops)
    if op.startswith("buffer_"):
        return "other", set(), set()
    if op.startswith("s_"):
        if op.startswith("s_cmp") or op.startswith("s_cbranch") or op in ("s_branch", "s_barrier", "s_waitcnt", "s_nop", "s_endpgm", "s_sleep", "s_setprio") or op.startswith("s_bitcmp"):
            return "salu", set(), R(ops)
        w = R(ops[:1])
        if "saveexec" in op: w |= {("s", 126), ("s", 127)}
        return "salu", w, R(ops[1:])
    return "other", set(), set()

def mfma_len(op):
    return 32 if "32x32" in op else 16

def check_hazards(lines, verbose=False):
    errs = []
    t = 0
    last_mfma_t = -1000; last_mfma_len = 16
    mf_w = {}
    mf_wset = {}
    mf_c = {}
    va_w = {}
    tr_w = {}
    sg_w = {}
    m0_w = -1000
    st_d = {}
    nstate = 0
    for idx, ln in enumerate(lines):
        if ln.endswith(":") or ln.startswith(".") or ln.startswith(";"):
            continue
        op, ops, mods = parse(ln)
        kind, w, rd = classify(op, ops, mods)
        ti = t
        if kind == "mfma":
            ti = max(ti, last_mfma_t + last_mfma_len)
        def need(cond_t, gap, why, reg):
            if ti - cond_t < gap:
                errs.append(f"line {idx}: {ln}  :: {why} on {reg}: gap {ti-cond_t} < {gap}")
        if kind == "mfma":
            for g in rd["ab"]:
                if g in mf_w: need(mf_w[g][0], mf_w[g][1], "MFMA D->A/B", g)
                if g in va_w: need(va_w[g], 12, "VALU->MFMA", g)
            for g in rd["c"]:
                if g in mf_w and mf_wset[g] != (frozenset(rd["c"]), mfma_len(op)):
                    need(mf_w[g][0], mf_w[g][1] - 8, "MFMA D->partial C", g)
                if g in va_w: need(va_w[g], 12, "VALU->MFMA C", g)
            for g in w:
                if g not in rd["c"] and g in mf_w and mf_wset[g] != (frozenset(w), mfma_len(op)):
                    need(mf_w[g][0], mf_w[g][1] - 8, "MFMA WAW", g)
            L = mfma_len(op)
            for g in w:
                mf_w[g] = (ti, 36 if L == 16 else 52); mf_wset[g] = (frozenset(w), L)
                va_w.pop(g, None)
            for g in rd["c"]:
                mf_c[g] = (ti, 16 if L == 16 else 32)
            last_mfma_t = ti; last_mfma_len = L
        else:
            if kind in ("valu", "ds", "vmem"):
                for g in (rd | w):
                    if g in mf_w: need(mf_w[g][0], mf_w[g][1], "MFMA D->" + kind, g)
            if kind == "valu":
                isdpp = any(m in mods for m in ("row_", "quad_perm", "wave_"))
                for g in rd:
                    if g[0] in "va":
                        if g in va_w and (isdpp or op.startswith("v_permlane")): need(va_w[g], 12, "VALU->DPP/permlane", g)
                        if g in va_w and op in ("v_readfirstlane_b32", "v_readlane_b32"): need(va_w[g], 8, "VALU->readlane", g)
                        if g in tr_w and op not in TRANS: need(tr_w[g], 8, "trans->VALU", g)
                    else:
                        if g in sg_w: need(sg_w[g], 12, "VALU sgpr->VALU", g)
                if op.startswith("v_cndmask") and len(ops) == 3:
                    for g in (("s", 106), ("s", 107)):
                        if g in sg_w: need(sg_w[g], 12, "VALU vcc->cndmask", g)
                for g in w:
                    if g in mf_c: need(mf_c[g][0], mf_c[g][1], "MFMA C WAR", g)
                    if g in st_d: need(st_d[g], 12, "wide store data WAR", g)
                    if g[0] in "va":
                        va_w[g] = ti
                        mf_w.pop(g, None)
                        if op in TRANS: tr_w[g] = ti
                        else: tr_w.pop(g, None)
                    else:
                        sg_w[g] = ti
            if kind == "vmem":
                for g in rd:
                    if g[0] == "s" and g in sg_w: need(sg_w[g], 24, "VALU sgpr->VMEM", g)
                if ("s", 124) in rd: need(m0_w, 8, "m0->DMA", "m0")
                if "store" in op and ("x4" in op or "x3" in op):
                    dat = ops[0] if op.startswith("buffer") else ops[1]
                    for g in regs_of(dat): st_d[g] = ti
            if kind in ("ds", "vmem"):
                for g in w:
                    if g in st_d: need(st_d[g], 8, "wide store data WAR(ld)", g)
                    va_w.pop(g, None); mf_w.pop(g, None); tr_w.pop(g, None)
            if kind == "salu":
                for g in w:
                    sg_w.pop(g, None)
                    if g == ("s", 124): m0_w = ti
        dur = 4
        if op == "s_nop": dur = 4 * (int(ops[0], 0) + 1)
        t = ti + dur
        if op in ("s_branch", "s_endpgm"):
            t += 1000
    if verbose:
        for e in errs: print("HAZARD", e)
    return errs
```

```python
from asmlib import *
from common import *
import math, struct

def f2u(x): return struct.unpack("<I", struct.pack("<f", x))[0]
def MF(D, A, B, C=None):
    return f"v_mfma_f32_16x16x32_bf16 {r(D,4)}, {r(A,4)}, {r(B,4)}, " + ("0" if C is None else r(C,4))
def MF16(D, A, B, C=None):
    return f"v_mfma_f32_16x16x16_bf16 {r(D,4)}, {r(A,2)}, {r(B,2)}, " + ("0" if C is None else r(C,4))
def cvt(d, a, b): return f"v_cvt_pk_bf16_f32 {v(d)}, {v(a)}, {v(b)}"
def adv(reg, n): return f"s_add_u32 {s(reg)}, {s(reg)}, {n}\ns_addc_u32 {s(reg+1)}, {s(reg+1)}, 0"
def srd(A, sreg, ptr, size):
    A(f"s_mov_b32 {s(sreg)}, {s(ptr)}")
    A(f"s_and_b32 {s(sreg+1)}, {s(ptr+1)}, 0xffff")
    A(f"s_mov_b32 {s(sreg+2)}, {size:#x}")
    A(f"s_mov_b32 {s(sreg+3)}, 0x20000")
def wsptr(A, dst, off_sreg, const):
    A(f"s_add_u32 {s(off_sreg)}, {s(off_sreg)}, {const}")
    A(f"s_add_u32 {s(dst)}, {s(S_WS)}, {s(off_sreg)}")
    A(f"s_addc_u32 {s(dst+1)}, {s(S_WS+1)}, 0")
BUD = f"s_sub_u32 {s(S_BUD)}, {s(S_BUD)}, 1\ns_cselect_b64 {s(S_ALIVE,2)}, 0, {s(S_ALIVE,2)}"

def spin(A, load, cmp_fail, sleep=1):
    L, Lo = A.newlabel("spin"), A.newlabel("spino")
    A.label(L)
    A(load)
    A(BUD)
    A("s_waitcnt vmcnt(0)")
    A(cmp_fail)
    A(f"s_and_b64 vcc, vcc, {s(S_ALIVE,2)}")
    A(f"s_cbranch_scc0 {Lo}")
    if sleep: A(f"s_sleep {sleep}")
    A(f"s_branch {L}")
    A.label(Lo)

def wait_arrived(A, vt, vz):
    A(f"s_movk_i32 {s(S_T)}, 256")
    spin(A, f"global_load_ushort {v(vt)}, {v(vz)}, {s(S_DBG,2)} offset:{D_ARR} sc1", f"v_cmp_gt_u32 vcc, {s(S_T)}, {v(vt)}")

def lane_consts(A, t):
    A(f"v_lshrrev_b32 {v(t)}, 4, v0")
    A(f"v_and_b32 {v(t+1)}, 15, {v(t)}")
    A(f"v_lshrrev_b32 {v(t+2)}, 4, {v(t)}")
    A(f"v_lshrrev_b32 {v(t+3)}, 2, {v(t)}")
    A(f"v_and_b32 {v(t+4)}, 3, {v(t)}")
    A(f"v_and_b32 {v(t+5)}, 3, {v(t+3)}")

def bits(A, dst, terms, tmp, first=True):
    for (src, lo, n, mul) in terms:
        A(f"v_bfe_u32 {v(tmp)}, {v(src)}, {lo}, {n}")
        if first:
            A(f"v_mul_u32_u24 {v(dst)}, {mul}, {v(tmp)}"); first = False
        else:
            A(f"v_mul_u32_u24 {v(tmp)}, {mul}, {v(tmp)}")
            A(f"v_add_u32 {v(dst)}, {v(dst)}, {v(tmp)}")

S_RING = 60
def loader(A, seq, depth=8, pre=0):
    n_ = len(seq)
    def issue(n):
        e = seq[n]
        for i in range(4):
            A(f"s_add_u32 m0, {s(S_RING)}, {(n % depth) * 4096 + i * 1024}")
            A(f"s_mov_b32 {s(S_T)}, {e['so'](i)}")
            A(f"buffer_load_dwordx4 {v(e['vd'])}, {s(e['srd'],4)}, {s(S_T)} offen lds")
    for n in range(min(depth, n_)): issue(n)
    for n in range(n_):
        later = min(n_ - 1, n + depth - 1) - n
        A(f"s_waitcnt vmcnt({4 * later})")
        e = seq[n]
        for x in range(2):
            for part in range(2):
                for u in range(2):
                    A(f"ds_read_b64_tr_b16 {r(e['dst'] + 8*x + 4*part + 2*u, 2)}, {v(e['vt'])} offset:{(n % depth) * 4096 + e['off'](x, part, u)}")
        if n + depth < n_:
            A("s_waitcnt lgkmcnt(0)")
            issue(n + depth)
    A("s_waitcnt lgkmcnt(0)")

XRS = 1056
XBUF = 32 * XRS
P_XR, P_KS, P_Z, P_T = 1, 2, 3, 4
P_XF = 16
P_ACC = 32
P_E = 80
P_W = 128
S_SX = 8; S_S1, S_S2, S_S3 = 12, 16, 20
S_XO, S_XL, S_XD, S_N, S_CNTU = 34, 35, 36, 37, 38
S_P0, S_P1, S_P2, S_FL = 40, 42, 44, 46
def wf(mat, ks, t): return P_W + 16 * (8 * mat + (ks >> 1)) + 8 * t + 4 * (ks & 1)
def acc(mat, rt, t): return P_ACC + 16 * mat + 8 * rt + 4 * t

def proj_setup(A, srds, rowstride, col_sreg, colbase):
    t = P_ACC
    lane_consts(A, t)
    vD, vT = P_T, P_T + 1
    A(f"s_mov_b32 {s(S_T)}, {rowstride}")
    A(f"v_mul_lo_u32 {v(vD)}, {s(S_T)}, {v(t+3)}")
    A(f"v_lshl_add_u32 {v(vD)}, {v(t+4)}, 4, {v(vD)}")
    A(f"v_add_u32 {v(vD)}, {s(col_sreg)}, {v(vD)}")
    A(f"s_lshl_b32 {s(S_RING)}, {s(S_W)}, 15")
    bits(A, vT, [(t+2, 0, 2, 512), (t+5, 0, 2, 64), (t+4, 0, 2, 8)], t+6)
    A(f"v_add_u32 {v(vT)}, {s(S_RING)}, {v(vT)}")
    bits(A, P_XR, [(t+1, 0, 4, XRS), (t+2, 0, 2, 16)], t+6)
    bits(A, P_KS, [(t+1, 2, 1, 4096), (t+2, 0, 2, 256), (t+1, 3, 1, 64), (t+1, 0, 2, 16)], t+6)
    A(f"v_mov_b32 {v(P_Z)}, 0")
    seq = []
    for m in (1, 2, 0):
        for kk in range(8):
            seq.append(dict(srd=srds[m], vd=vD, so=(lambda i, kk=kk, m=m: (64*kk + 16*i) * rowstride + colbase[m]), vt=vT,
                            off=(lambda x, part, u: (32*part + 4*u) * 64 + x * 32), dst=P_W + 16 * (8*m + kk)))
    loader(A, seq)

def x_dma(A):
    for i in range(8):
        A(f"s_add_u32 m0, {s(S_XL)}, {i * XRS}")
        A(f"s_add_u32 {s(S_T)}, {s(S_XO)}, {i * 1024}")
        A(f"buffer_load_dwordx4 v0, {s(S_SX,4)}, {s(S_T)} offen lds")

def proj_loop(A, xstep, nst, epilogue, midhook):
    A(f"s_mul_i32 {s(S_XL)}, {s(S_W)}, {8 * XRS}")
    A(f"s_mov_b32 {s(S_XD)}, {XBUF}")
    A(f"s_mov_b32 {s(S_CNTU)}, 0")
    A("s_barrier")
    x_dma(A)
    A("s_waitcnt vmcnt(0)")
    L = A.newlabel("proj")
    A.label(L)
    A(f"s_waitcnt vmcnt({nst})")
    A("s_barrier")
    rd = lambda ks: [f"ds_read_b128 {v(P_XF + 8*(ks&1) + 4*rt, 4)}, {v(P_XR)} offset:{rt*16*XRS + ks*64}" for rt in range(2)]
    A("\n".join(rd(0)))
    A(f"s_add_u32 {s(S_XO)}, {s(S_XO)}, {xstep}")
    A(f"s_add_u32 {s(S_XL)}, {s(S_XL)}, {s(S_XD)}")
    x_dma(A)
    for ks in range(16):
        if ks < 15:
            A("\n".join(rd(ks + 1))); A("s_waitcnt lgkmcnt(2)")
        else:
            A("s_waitcnt lgkmcnt(0)")
        for m in (1, 2, 0):
            for rt in range(2):
                for t in range(2):
                    xf = P_XF + 8*(ks&1) + 4*rt
                    a_, b_ = (xf, wf(m, ks, t)) if m == 2 else (wf(m, ks, t), xf)
                    A(MF(acc(m, rt, t), a_, b_, acc(m, rt, t) if ks else None))
        if ks == 5 and midhook: midhook()
    A(f"v_add_u32 {v(P_XR)}, {s(S_XD)}, {v(P_XR)}")
    A(f"s_sub_u32 {s(S_XD)}, 0, {s(S_XD)}")
    epilogue()
    A(f"s_add_u32 {s(S_CNTU)}, {s(S_CNTU)}, 1")
    A(f"s_cmp_lt_u32 {s(S_CNTU)}, {s(S_N)}")
    A(f"s_cbranch_scc1 {L}")

def post_flag(A, sval):
    Ls = A.newlabel("nofl")
    A(f"s_cmp_eq_u32 {s(S_W)}, 0")
    A(f"s_cbranch_scc0 {Ls}")
    A(f"v_mov_b32 {v(P_T)}, {sval}")
    A("s_mov_b64 exec, 1")
    A(f"global_store_dword {v(P_Z)}, {v(P_T)}, {s(S_FL,2)} sc1")
    A("s_mov_b64 exec, -1")
    A.label(Ls)

def role_qkv(A):
    A(f"s_load_dwordx4 s[80:83], s[0:1], {KA['B_Wq']}")
    A(f"s_load_dwordx2 s[84:85], s[0:1], {KA['B_Wv']}")
    A(f"s_load_dwordx2 s[86:87], s[0:1], {KA['B_x']}")
    A(f"s_mul_i32 s70, {s(S_H)}, 43691")
    A("s_lshr_b32 s70, s70, 17")
    A("s_mul_i32 s71, s70, 3")
    A(f"s_sub_u32 s71, {s(S_H)}, s71")
    A("s_waitcnt lgkmcnt(0)")
    srd(A, S_S1, 80, 4 << 20); srd(A, S_S2, 82, 4 << 20); srd(A, S_S3, 84, 4 << 20); srd(A, S_SX, 86, 2 << 20)
    A("s_lshl_b32 s72, s70, 8")
    A(f"s_lshl_b32 s73, {s(S_W)}, 6")
    A("s_add_u32 s72, s72, s73")
    proj_setup(A, [S_S1, S_S2, S_S3], 8192, 72, [0, 0, 0])
    A(";mark 100")
    wait_arrived(A, P_T, P_Z)
    A("s_cmp_eq_u32 s71, 0")
    A(f"s_cselect_b32 {s(S_N)}, 22, 21")
    A(f"s_lshl_b32 {s(S_XO)}, s71, 15")
    A(f"s_lshl_b32 s73, {s(S_W)}, 13")
    A(f"s_add_u32 {s(S_XO)}, {s(S_XO)}, s73")
    A("s_lshl_b32 s72, s70, 6")
    A("s_add_u32 s72, s72, s71")
    A(f"s_lshl_b32 s74, {s(S_W)}, 10")
    A("s_lshl_b32 s73, s72, 13"); A("s_add_u32 s73, s73, s74"); wsptr(A, S_P0, 73, WS_Q + 2048)
    A("s_lshl_b32 s73, s72, 14"); A("s_add_u32 s73, s73, s74"); wsptr(A, S_P1, 73, WS_KV)
    A("s_lshl_b32 s73, s72, 14"); A("s_add_u32 s73, s73, s74"); A("s_add_u32 s73, s73, s74"); wsptr(A, S_P2, 73, WS_KV + 8192)
    A("s_lshl_b32 s73, s70, 7"); A("s_lshl_b32 s74, s71, 2"); A("s_add_u32 s73, s73, s74"); wsptr(A, S_FL, 73, F_Q)
    def epi():
        for m, base in ((1, P_E), (2, P_E + 8), (0, P_E + 16)):
            for x in range(2):
                for j in range(4):
                    if m == 2: a0 = acc(2, j >> 1, x) + 2 * (j & 1); A(cvt(base + 4*x + j, a0, a0 + 1))
                    else: A(cvt(base + 4*x + j, acc(m, x, 0) + j, acc(m, x, 1) + j))
            for x in range(2):
                if m == 1: A(f"global_store_dwordx4 {v(P_KS)}, {v(base + 4*x, 4)}, {s(S_P1,2)} offset:{128*x} sc1")
                if m == 2: A(f"global_store_dwordx4 v0, {v(base + 4*x, 4)}, {s(S_P2,2)} offset:{1024*x} sc1")
                if m == 0: A(f"global_store_dwordx4 v0, {v(base + 4*x, 4)}, {s(S_P0,2)} offset:{4096*x - 2048} sc1")
        A(adv(S_P0, 3 * 8192)); A(adv(S_P1, 3 * 16384)); A(adv(S_P2, 3 * 16384))
    def mid():
        A("s_waitcnt vmcnt(8)")
        A("s_barrier")
        post_flag(A, s(S_CNTU))
    proj_loop(A, 3 * 32768, 6, epi, mid)
    A("s_waitcnt vmcnt(0)")
    A("s_barrier")
    post_flag(A, 1000)
    A("s_endpgm")

def xmax(A, op, x, y):
    A(f"v_mov_b32 {v(y)}, {v(x)}"); A("s_nop 1")
    A(f"v_permlane32_swap_b32 {v(x)}, {v(y)}")
    A(f"{op} {v(x)}, {v(x)}, {v(y)}")
    A(f"v_mov_b32 {v(y)}, {v(x)}"); A("s_nop 1")
    A(f"v_permlane16_swap_b32 {v(x)}, {v(y)}")
    A(f"{op} {v(x)}, {v(x)}, {v(y)}")

def role_att(A):
    vKS, vZ, vKM, vL4, vOS, vT = 1, 2, 3, 4, 5, 6
    ONE = 12
    Q, K, Vf, KMf, VM, T, P, O, SU = 16, 32, 64, 96, 112, 128, 140, 148, 180
    sQ, sK, sV, sV2, sKM, sO, sFQ, sFC, sFO = 8, 10, 12, 14, 16, 18, 20, 22, 24
    sS, sSet, sCnt, sMask, sC, sNeg = 34, 35, 36, 70, 38, 40
    t = 200
    lane_consts(A, t)
    bits(A, vKS, [(t+1, 2, 1, 4096), (t+2, 0, 2, 256), (t+1, 3, 1, 64), (t+1, 0, 2, 16)], t+6)
    bits(A, vKM, [(t+1, 0, 1, 256), (t+1, 2, 2, 64), (t+2, 0, 2, 16)], t+6)
    bits(A, vOS, [(t+1, 3, 1, 65536), (t+2, 0, 2, 256), (t+1, 0, 3, 16)], t+6)
    A(f"v_lshlrev_b32 {v(vL4)}, 2, {v(t)}")
    A(f"v_mov_b32 {v(vZ)}, 0")
    for i in range(4): A(f"v_mov_b32 {v(ONE+i)}, 0x3f803f80")
    for i in range(8): A(f"v_mov_b32 {v(VM + 2*i + 1)}, 0")
    A(f"v_mov_b32 {v(P+5)}, 0")
    A(f"s_and_b32 s90, {s(S_H)}, 15"); A("s_lshl_b32 s90, s90, 1"); A(f"s_lshr_b32 s91, {s(S_W)}, 1"); A("s_add_u32 s90, s90, s91")
    A(f"s_and_b32 s91, {s(S_W)}, 1")
    A(f"s_lshr_b32 {s(sS)}, {s(S_H)}, 4")
    A(f"s_mov_b32 {s(sSet)}, {s(sS)}"); A(f"s_mov_b32 {s(sCnt)}, 0")
    A("s_lshl_b32 s92, s91, 4")
    A(f"v_add_u32 {v(t+6)}, s92, {v(t+1)}")
    A(f"v_lshlrev_b32 {v(t+7)}, 2, {v(t+2)}")
    A(f"v_sub_u32 {v(t+6)}, {v(t+6)}, {v(t+7)}")
    for i in range(8): A(f"v_cmp_le_i32 {s(sMask + 2*i, 2)}, {16*(i>>2) + (i&3)}, {v(t+6)}")
    c = (128 ** -0.5) * math.log2(math.e)
    A(f"s_mov_b32 {s(sC)}, {f2u(c):#x}"); A(f"s_mov_b32 {s(sC+1)}, {f2u(-c):#x}")
    A(f"v_mov_b32 {v(vT+4)}, {f2u(-1e9 * math.sqrt(128)):#x}")
    A("s_lshl_b32 s92, s90, 6"); A(f"s_add_u32 s92, s92, {s(sS)}")
    A("s_lshl_b32 s93, s92, 13"); A("s_lshl_b32 s94, s91, 12"); A("s_add_u32 s93, s93, s94"); wsptr(A, sQ, 93, WS_Q)
    A("s_lshl_b32 s93, s92, 14"); wsptr(A, sK, 93, WS_KV)
    A("s_lshl_b32 s93, s92, 14"); wsptr(A, sV, 93, WS_KV + 8192 + 4096)
    A("s_lshl_b32 s93, s92, 12"); wsptr(A, sKM, 93, WS_KM)
    A(f"s_lshl_b32 s93, {s(sS)}, 18"); A("s_lshl_b32 s94, s91, 17"); A("s_add_u32 s93, s93, s94")
    A("s_lshl_b32 s94, s90, 11"); A("s_add_u32 s93, s93, s94"); wsptr(A, sO, 93, WS_O)
    A("s_lshl_b32 s93, s90, 7"); wsptr(A, sFQ, 93, F_Q)
    A("s_lshl_b32 s93, s90, 7"); wsptr(A, sFC, 93, F_C)
    A(f"s_lshl_b32 s93, {s(sS)}, 8"); A("s_lshl_b32 s94, s91, 7"); A("s_add_u32 s93, s93, s94")
    A("s_lshl_b32 s94, s90, 2"); A("s_add_u32 s93, s93, s94"); wsptr(A, sFO, 93, F_O)
    wait_arrived(A, vT, vZ)
    L = A.newlabel("att")
    A.label(L)
    A(f"s_lshl_b32 {s(S_T)}, {s(sSet)}, 2")
    A(f"v_mov_b32 {v(vT+1)}, {s(S_T)}")
    spin(A, f"global_load_dword {v(vT)}, {v(vT+1)}, {s(sFQ,2)} sc1", f"v_cmp_ge_u32 vcc, {s(sCnt)}, {v(vT)}", 4)
    for ks in range(4): A(f"global_load_dwordx4 {v(Q + 4*ks, 4)}, v0, {s(sQ,2)} offset:{1024*ks} sc1")
    for kt in range(2):
        for ks in range(4): A(f"global_load_dwordx4 {v(K + 16*kt + 4*ks, 4)}, {v(vKS)}, {s(sK,2)} offset:{1024*ks + 128*kt} sc1")
    for et in range(8): A(f"global_load_dwordx4 {v(Vf + 4*et, 4)}, v0, {s(sV,2)} offset:{1024*et - 4096} sc1")
    A("s_waitcnt vmcnt(8)")
    for kt in range(2):
        for ks in range(4): A(MF(T + 4*kt, K + 16*kt + 4*ks, Q + 4*ks, T + 4*kt if ks else None))
    spin(A, f"global_load_dword {v(vT)}, {v(vZ)}, {s(sFC,2)} sc1", f"v_cmp_ge_u32 vcc, {s(sS)}, {v(vT)}", 1)
    for ks in range(4): A(f"global_load_dwordx4 {v(KMf + 4*ks, 4)}, {v(vKM)}, {s(sKM,2)} offset:{512*ks} sc1")
    for et in range(8): A(f"global_load_dword {v(VM + 2*et)}, {v(vL4)}, {s(sKM,2)} offset:{2048 + 256*et} sc1")
    for i in range(8): A(f"v_cndmask_b32 {v(T+i)}, {v(vT+4)}, {v(T+i)}, {s(sMask + 2*i, 2)}")
    mx = vT + 2
    A(f"v_max3_f32 {v(mx)}, {v(T)}, {v(T+1)}, {v(T+2)}")
    A(f"v_max3_f32 {v(mx)}, {v(mx)}, {v(T+3)}, {v(T+4)}")
    A(f"v_max3_f32 {v(mx)}, {v(mx)}, {v(T+5)}, {v(T+6)}")
    A(f"v_max_f32 {v(mx)}, {v(mx)}, {v(T+7)}")
    for ks in range(4):
        A(f"s_waitcnt vmcnt({8 + 3 - ks})")
        A(MF(T + 8, KMf + 4*ks, Q + 4*ks, T + 8 if ks else None))
    A("s_nop 7")
    A(f"v_max3_f32 {v(mx)}, {v(mx)}, {v(T+8)}, {v(T+9)}")
    xmax(A, "v_max_f32", mx, mx + 1)
    A(f"v_mul_f32 {v(mx)}, {s(sC+1)}, {v(mx)}")
    for i in range(10): A(f"v_fma_f32 {v(T+i)}, {v(T+i)}, {s(sC)}, {v(mx)}")
    for i in range(10): A(f"v_exp_f32 {v(T+i)}, {v(T+i)}")
    for i in range(5): A(cvt(P + i, T + 2*i, T + 2*i + 1))
    A("s_waitcnt vmcnt(0)")
    A("s_nop 0")
    A(MF(SU, ONE, P))
    for et in range(8): A(MF(O + 4*et, Vf + 4*et, P))
    A(MF16(SU, ONE, P + 4, SU))
    for et in range(8): A(MF16(O + 4*et, VM + 2*et, P + 4, O + 4*et))
    A(f"v_rcp_f32 {v(SU)}, {v(SU)}")
    A("s_nop 0")
    for ks in range(4):
        if ks == 3: A("s_nop 1")
        for j in range(4):
            a0 = O + 8*ks + 2*j
            A(f"v_mul_f32 {v(a0)}, {v(a0)}, {v(SU)}"); A(f"v_mul_f32 {v(a0+1)}, {v(a0+1)}, {v(SU)}")
            A(cvt(K + 4*ks + j, a0, a0 + 1))
        A(f"global_store_dwordx4 {v(vOS)}, {v(K + 4*ks, 4)}, {s(sO,2)} offset:{1024*(ks>>1) + 128*(ks&1)} sc1")
    A(f"v_mov_b32 {v(vT)}, 1")
    A("s_waitcnt vmcnt(0)")
    A("s_mov_b64 exec, 1")
    A(f"global_store_dword {v(vZ)}, {v(vT)}, {s(sFO,2)} sc1")
    A("s_mov_b64 exec, -1")
    A(adv(sQ, 2*8192)); A(adv(sK, 2*16384)); A(adv(sV, 2*16384)); A(adv(sKM, 2*4096)); A(adv(sO, 2 << 18)); A(adv(sFO, 512))
    A(f"s_add_u32 {s(sSet)}, {s(sSet)}, 2")
    A(f"s_cmp_ge_u32 {s(sSet)}, 3")
    A(f"s_cselect_b32 {s(S_T)}, 3, 0")
    A(f"s_addc_u32 {s(sCnt)}, {s(sCnt)}, 0")
    A(f"s_sub_u32 {s(sSet)}, {s(sSet)}, {s(S_T)}")
    A(f"s_add_u32 {s(sS)}, {s(sS)}, 2")
    A(f"s_cmp_lt_u32 {s(sS)}, 64")
    A(f"s_cbranch_scc1 {L}")
    A("s_endpgm")

def role_b4(A):
    vIDX, vZ, vF, vLW, vLR, vOUT, vT = 1, 2, 3, 4, 5, 6, 8
    AC, OF, RD = 16, 32, 96
    W = 256
    sWo, sO, sO2, sFO, sOut, sS, sD = 8, 12, 14, 16, 18, 34, 35
    RS, PS = 36, 8 * 36
    BUFB = 8 * PS * 4
    A(f"s_load_dwordx2 s[80:81], s[0:1], {KA['B_Wo']}")
    A(f"s_load_dwordx2 s[82:83], s[0:1], {KA['out']}")
    t = 32
    lane_consts(A, t)
    A(f"s_lshr_b32 s90, {s(S_H)}, 4"); A(f"s_and_b32 s91, {s(S_H)}, 15")
    vD, vTr = vT, vT + 1
    bits(A, vD, [(t+3, 0, 4, 1024), (t+4, 0, 2, 16)], t+6)
    A(f"s_lshl_b32 s92, {s(S_W)}, 20"); A("s_lshl_b32 s93, s91, 6"); A("s_add_u32 s92, s92, s93")
    A(f"v_add_u32 {v(vD)}, s92, {v(vD)}")
    A(f"s_lshl_b32 {s(S_RING)}, {s(S_W)}, 15")
    bits(A, vTr, [(t+5, 1, 1, 32*64), (t+2, 0, 1, 16*64), (t+2, 1, 1, 4*64), (t+5, 0, 1, 64), (t+4, 0, 2, 8)], t+6)
    A(f"v_add_u32 {v(vTr)}, {s(S_RING)}, {v(vTr)}")
    A(f"v_mov_b32 {v(t+6)}, 0x4444"); A(f"v_mov_b32 {v(t+7)}, 0xeeee")
    A(f"v_cmp_lt_u32 vcc, 7, {v(t+1)}"); A("s_nop 1")
    A(f"v_cndmask_b32 {v(vIDX)}, {v(t+6)}, {v(t+7)}, vcc")
    A(f"v_mov_b32 {v(vZ)}, 0")
    bits(A, vF, [(t, 0, 3, 4)], t+6)
    bits(A, vLW, [(t+2, 1, 1, PS*4), (t+2, 0, 1, 4*RS*4), (t+1, 0, 4, 4)], t+6)
    A(f"s_mul_i32 s92, {s(S_W)}, {2*PS*4}"); A(f"v_add_u32 {v(vLW)}, s92, {v(vLW)}")
    bits(A, vLR, [(t+2, 0, 2, RS*4), (t+1, 0, 4, 8)], t+6)
    A(f"s_and_b32 s92, {s(S_W)}, 1"); A(f"s_mul_i32 s93, s92, {4*RS*4}"); A(f"v_add_u32 {v(vLR)}, s93, {v(vLR)}")
    bits(A, vOUT, [(t+2, 0, 2, 2048), (t+1, 0, 4, 4)], t+6)
    A("s_waitcnt lgkmcnt(0)")
    srd(A, sWo, 80, 4 << 20)
    A("s_lshl_b32 s93, s90, 14"); A("s_lshl_b32 s92, s92, 13"); A("s_add_u32 s93, s93, s92")
    A("s_lshl_b32 s92, s91, 6"); A("s_add_u32 s93, s93, s92"); A("s_add_u32 s93, s93, 1024")
    A(f"s_add_u32 {s(sOut)}, s82, s93"); A(f"s_addc_u32 {s(sOut+1)}, s83, 0")
    A("s_lshl_b32 s93, s90, 16"); A(f"s_lshl_b32 s92, {s(S_W)}, 14"); A("s_add_u32 s93, s93, s92"); wsptr(A, sO, 93, WS_O + 4096)
    A(f"s_add_u32 {s(sO2)}, {s(sO)}, 8192"); A(f"s_addc_u32 {s(sO2+1)}, {s(sO+1)}, 0")
    A("s_lshr_b32 s93, s90, 1"); A("s_lshl_b32 s93, s93, 7"); A(f"s_lshl_b32 s92, {s(S_W)}, 5"); A("s_add_u32 s93, s93, s92"); wsptr(A, sFO, 93, F_O)
    seq = [dict(srd=sWo, vd=vD, so=(lambda i, n=n: (64*n + 16*i) * 1024), vt=vTr,
                off=(lambda x, part, u: (8*part + 2*u) * 64 + x * 32), dst=W + 16*n) for n in range(16)]
    loader(A, seq)
    A(";mark 100")
    wait_arrived(A, vT, vZ)
    A("s_barrier")
    A(f"s_mov_b32 {s(sS)}, 0"); A(f"s_mov_b32 {s(sD)}, {BUFB}")
    L = A.newlabel("b4")
    A.label(L)
    for i in range(4): A(f"v_mov_b64 {v(AC + 2*i, 2)}, 0")
    spin(A, f"global_load_dword {v(vT)}, {v(vF)}, {s(sFO,2)} sc1", f"v_cmp_eq_u32 vcc, 0, {v(vT)}", 1)
    for n in range(16):
        A(f"global_load_dwordx4 {v(OF + 4*n, 4)}, v0, {s(sO if n < 8 else sO2, 2)} offset:{1024*(n&7) - 4096} sc1")
    for n in range(16):
        A(f"s_waitcnt vmcnt({15 - n})")
        for x in range(2):
            A(f"v_smfmac_f32_16x16x64_bf16 {v(AC + 4*x, 4)}, {v(OF + 4*n, 4)}, {r(W + 16*n + 8*x, 8)}, {v(vIDX)}")
    A(adv(sO, 1 << 18)); A(adv(sO2, 1 << 18)); A(adv(sFO, 256))
    A("s_nop 1")
    for j in range(4): A(f"ds_write2_b32 {v(vLW)}, {v(AC + j)}, {v(AC + 4 + j)} offset0:{j*RS} offset1:{j*RS + 16}")
    A("s_waitcnt lgkmcnt(0)")
    A("s_barrier")
    Ls = A.newlabel("b4s")
    A(f"s_cmp_ge_u32 {s(S_W)}, 2")
    A(f"s_cbranch_scc1 {Ls}")
    for p in range(8): A(f"ds_read_b64 {v(RD + 2*p, 2)}, {v(vLR)} offset:{p*PS*4}")
    for p in range(1, 8):
        A(f"s_waitcnt lgkmcnt({7 - p})")
        A(f"v_pk_add_f32 {v(RD,2)}, {v(RD,2)}, {v(RD + 2*p, 2)}")
    A(cvt(RD, RD, RD + 1))
    A(f"global_store_dword {v(vOUT)}, {v(RD)}, {s(sOut,2)}")
    A.label(Ls)
    A(adv(sOut, 32 * 2048))
    A(f"v_add_u32 {v(vLW)}, {s(sD)}, {v(vLW)}"); A(f"v_add_u32 {v(vLR)}, {s(sD)}, {v(vLR)}")
    A(f"s_sub_u32 {s(sD)}, 0, {s(sD)}")
    A(f"s_add_u32 {s(sS)}, {s(sS)}, 1")
    A(f"s_cmp_lt_u32 {s(sS)}, 64")
    A(f"s_cbranch_scc1 {L}")
    A("s_endpgm")

def role_a(A):
    WPH, IDN, ONE = 6, 10, 12
    KV = 96
    E = 80
    sWo, sOut, sL2e = 12, 24, 52
    A(f"s_load_dwordx8 s[80:87], s[0:1], {KA['A_x']}")
    A(f"s_load_dwordx2 s[88:89], s[0:1], {KA['out']}")
    A(f"s_lshr_b32 s70, {s(S_H)}, 2"); A(f"s_and_b32 s71, {s(S_H)}, 3")
    A("s_lshl_b32 s74, s71, 2"); A(f"s_add_u32 s74, s74, {s(S_W)}")
    A("s_waitcnt lgkmcnt(0)")
    srd(A, S_SX, 80, 2 << 20); srd(A, S_S2, 82, 512 * 3072); srd(A, S_S3, 84, 16384); srd(A, sWo, 86, 512 * 1024)
    t = P_ACC
    lane_consts(A, t)
    bits(A, E, [(t+2, 0, 2, 128), (t+1, 0, 4, 2)], t+6)
    A("s_lshl_b32 s72, s74, 10")
    for hd in range(2):
        for jj in range(4):
            A(f"buffer_load_ushort {v(E + 2 + 4*hd + jj)}, {v(E)}, {s(S_S3,4)}, s72 offen offset:{512*hd + 32*jj}")
    A(f"v_lshlrev_b32 {v(t+6)}, 2, {v(t+2)}")
    A(f"v_sub_u32 {v(t+6)}, {v(t+1)}, {v(t+6)}")
    A(f"v_mov_b32 {v(t+7)}, 0x3f80"); A(f"v_mov_b32 {v(t+8)}, 0x3f800000")
    for d in range(2):
        A(f"v_cmp_eq_u32 vcc, {2*d}, {v(t+6)}"); A("s_nop 1")
        A(f"v_cndmask_b32 {v(IDN+d)}, 0, {v(t+7)}, vcc")
        A(f"v_cmp_eq_u32 vcc, {2*d+1}, {v(t+6)}"); A("s_nop 1")
        A(f"v_cndmask_b32 {v(IDN+d)}, {v(IDN+d)}, {v(t+8)}, vcc")
    for i in range(4): A(f"v_mov_b32 {v(ONE+i)}, 0x3f803f80")
    for i in range(16): A(f"v_mov_b64 {v(KV + 2*i, 2)}, 0")
    A("s_waitcnt vmcnt(0)")
    for i in range(4): A(f"v_lshl_or_b32 {v(WPH+i)}, {v(E + 3 + 2*i)}, 16, {v(E + 2 + 2*i)}")
    A("s_lshl_b32 s72, s74, 6")
    proj_setup(A, [S_S2, S_S2, S_S2], 3072, 72, [0, 1024, 2048])
    wait_arrived(A, P_T, P_Z)
    A(f"s_mov_b32 {s(S_N)}, 8")
    A(f"s_lshl_b32 {s(S_XO)}, s70, 18"); A(f"s_lshl_b32 s73, {s(S_W)}, 13"); A(f"s_add_u32 {s(S_XO)}, {s(S_XO)}, s73")
    A(f"s_lshl_b32 s73, {s(S_H)}, 17"); A(f"s_lshl_b32 s72, {s(S_W)}, 15"); A("s_add_u32 s73, s73, s72"); wsptr(A, S_P0, 73, WS_APHI)
    l2e = math.log2(math.e)
    A(f"s_mov_b32 {s(sL2e)}, {f2u(l2e):#x}"); A(f"s_mov_b32 {s(sL2e+1)}, {f2u(-l2e):#x}")
    def softmax2(x, out):
        p, n_, mx, mn, y = E, E + 4, E + 8, E + 9, E + 10
        A(f"v_max3_f32 {v(mx)}, {v(x)}, {v(x+1)}, {v(x+2)}"); A(f"v_min3_f32 {v(mn)}, {v(x)}, {v(x+1)}, {v(x+2)}")
        A(f"v_max_f32 {v(mx)}, {v(mx)}, {v(x+3)}"); A(f"v_min_f32 {v(mn)}, {v(mn)}, {v(x+3)}")
        def both(o1, o2):
            for pl in ("v_permlane32_swap_b32", "v_permlane16_swap_b32"):
                A(f"v_mov_b64 {v(y,2)}, {v(mx,2)}"); A("s_nop 1")
                A(f"{pl} {v(mx)}, {v(y)}"); A(f"{pl} {v(mn)}, {v(y+1)}")
                A(f"{o1} {v(mx)}, {v(mx)}, {v(y)}"); A(f"{o2} {v(mn)}, {v(mn)}, {v(y+1)}")
        both("v_max_f32", "v_min_f32")
        A(f"v_mul_f32 {v(mx)}, {s(sL2e+1)}, {v(mx)}"); A(f"v_mul_f32 {v(mn)}, {s(sL2e)}, {v(mn)}")
        for i in range(4):
            A(f"v_fma_f32 {v(p+i)}, {v(x+i)}, {s(sL2e)}, {v(mx)}"); A(f"v_fma_f32 {v(n_+i)}, {v(x+i)}, {s(sL2e+1)}, {v(mn)}")
        for i in range(8): A(f"v_exp_f32 {v(p+i)}, {v(p+i)}")
        A(f"v_add_f32 {v(mx)}, {v(p)}, {v(p+1)}"); A(f"v_add_f32 {v(mn)}, {v(n_)}, {v(n_+1)}")
        for i in (2, 3):
            A(f"v_add_f32 {v(mx)}, {v(mx)}, {v(p+i)}"); A(f"v_add_f32 {v(mn)}, {v(mn)}, {v(n_+i)}")
        both("v_add_f32", "v_add_f32")
        A(f"v_rcp_f32 {v(mx)}, {v(mx)}"); A(f"v_rcp_f32 {v(mn)}, {v(mn)}")
        for i in range(4): A(f"v_mul_f32 {v(p+i)}, {v(p+i)}, {v(mx)}")
        for i in range(4): A(f"v_mul_f32 {v(n_+i)}, {v(n_+i)}, {v(mn)}")
        for i in range(4): A(cvt(out + i, p + 2*i, p + 2*i + 1))
    def epi():
        X = P_XF
        for m in (1, 0):
            for rt in range(2):
                for hd in range(2):
                    a0 = acc(m, rt, hd); xr = X + 8*(1 - m) + 4*rt + 2*hd
                    A(cvt(xr, a0, a0 + 1)); A(cvt(xr + 1, a0 + 2, a0 + 3))
        A("s_nop 0")
        for m in (1, 0):
            for rt in range(2):
                for hd in range(2):
                    A(MF16(acc(m, rt, hd), WPH + 2*hd, X + 8*(1 - m) + 4*rt + 2*hd))
        for rt in range(2):
            for hd in range(2): softmax2(acc(1, rt, hd), acc(1, rt, hd))
        for hd in range(2):
            for jx in range(4):
                a0 = acc(2, jx >> 1, hd) + 2 * (jx & 1); A(cvt(X + 4*hd + jx, a0, a0 + 1))
        for hd in range(2):
            A("s_nop 0")
            for sg in range(2):
                for rt in range(2): A(MF16(acc(2, sg, rt), acc(1, rt, hd) + 2*sg, IDN))
            softmax2(acc(0, 0, hd), acc(0, 0, hd))
            for sg in range(2):
                for jx in range(4):
                    a0 = acc(2, sg, jx >> 1) + 2 * (jx & 1); A(cvt(X + 8 + 4*sg + jx, a0, a0 + 1))
            A("s_nop 1")
            for sg in range(2):
                A(MF(KV + 16*hd + 4*sg, X + 8 + 4*sg, X + 4*hd, KV + 16*hd + 4*sg))
                A(MF(KV + 16*hd + 8 + 4*sg, X + 8 + 4*sg, ONE, KV + 16*hd + 8 + 4*sg))
            softmax2(acc(0, 1, hd), acc(0, 1, hd))
        for rt in range(2):
            for hd in range(2):
                A(f"global_store_dwordx4 v0, {v(acc(0, rt, hd), 4)}, {s(S_P0,2)} offset:{2048*rt + 1024*hd} sc1")
        A(adv(S_P0, 4096))
    proj_loop(A, 32768, 4, epi, None)
    A(";mark 100")
    A("s_lshl_b32 s73, s74, 16"); A("s_lshl_b32 s72, s70, 13"); A("s_add_u32 s73, s73, s72"); wsptr(A, S_P1, 73, WS_AKV + 4096)
    for i in range(8): A(f"global_store_dwordx4 v0, {v(KV + 4*i, 4)}, {s(S_P1,2)} offset:{1024*i - 4096} sc1")
    A("s_lshl_b32 s73, s71, 7"); A("s_lshl_b32 s72, s70, 2"); A("s_add_u32 s73, s73, s72"); wsptr(A, S_FL, 73, F_A1)
    A("s_waitcnt vmcnt(0)")
    A("s_barrier")
    post_flag(A, 1)
    lane_consts(A, t)
    vD, vT, vF, vOUT = E, E + 1, E + 2, E + 3
    bits(A, vD, [(t+3, 0, 4, 1024), (t+4, 0, 2, 16)], t+6)
    A("s_lshl_b32 s72, s74, 6"); A(f"v_add_u32 {v(vD)}, s72, {v(vD)}")
    bits(A, vT, [(t+2, 0, 2, 256), (t+5, 0, 2, 64), (t+4, 0, 2, 16)], t+6)
    A(f"v_add_u32 {v(vT)}, {s(S_RING)}, {v(vT)}")
    bits(A, vF, [(t, 0, 3, 4)], t+6)
    bits(A, vOUT, [(t+1, 0, 4, 2048), (t+2, 0, 2, 16)], t+6)
    WO = 256
    seq = [dict(srd=sWo, vd=vD, so=(lambda i, n=n: (64*n + 16*i) * 1024), vt=vT,
                off=(lambda x, part, u: (32*part + 16*u) * 64 + x * 8), dst=WO + 16*n) for n in range(8)]
    loader(A, seq)
    A("s_lshl_b32 s73, s71, 7"); wsptr(A, S_FL, 73, F_A1)
    spin(A, f"global_load_dword {v(P_T)}, {v(vF)}, {s(S_FL,2)} sc1", f"v_cmp_eq_u32 vcc, 0, {v(P_T)}", 4)
    A("s_lshl_b32 s73, s74, 16"); wsptr(A, S_P1, 73, WS_AKV + 4096)
    B0 = 128
    for half in range(2):
        for g_ in range(4):
            dst = KV if (half == 0 and g_ == 0) else B0 + 32*g_
            for i in range(8): A(f"global_load_dwordx4 {v(dst + 4*i, 4)}, v0, {s(S_P1,2)} offset:{1024*i - 4096} sc1")
            A(adv(S_P1, 8192))
        A("s_waitcnt vmcnt(0)")
        for g_ in range(4):
            if half == 0 and g_ == 0: continue
            for i in range(16): A(f"v_pk_add_f32 {v(KV + 2*i, 2)}, {v(KV + 2*i, 2)}, {v(B0 + 32*g_ + 2*i, 2)}")
    KB = 16
    for hd in range(2):
        for z in range(2):
            for jx in range(4):
                a0 = KV + 16*hd + 8*z + 2*jx; A(cvt(KB + 8*hd + 4*z + jx, a0, a0 + 1))
    A(f"s_lshl_b32 s73, {s(S_H)}, 17"); A(f"s_lshl_b32 s72, {s(S_W)}, 15"); A("s_add_u32 s73, s73, s72"); wsptr(A, S_P0, 73, WS_APHI + 4096)
    for i in range(32):
        A(f"global_load_dwordx4 {v(B0 + 4*i, 4)}, v0, {s(S_P0,2)} offset:{1024*(i&7) - 4096} sc1")
        if i & 7 == 7: A(adv(S_P0, 8192))
    A("s_lshl_b32 s73, s70, 18"); A("s_lshl_b32 s72, s74, 10"); A("s_add_u32 s73, s73, s72"); wsptr(A, S_P1, 73, WS_AO)
    A(f"s_mov_b32 {s(sL2e)}, {f2u(1e-6):#x}")
    A("s_waitcnt vmcnt(0)")
    N = 32
    for tl in range(16):
        nb = N + 20 * (tl & 1)
        for hd in range(2):
            A(MF(nb + 8 + 4*hd, KB + 8*hd + 4, B0 + 8*tl + 4*hd))
        for hd in range(2):
            A(MF(nb + 4*hd, KB + 8*hd, B0 + 8*tl + 4*hd))
        for hd in range(2): A(f"v_add_f32 {v(nb + 8 + 4*hd)}, {s(sL2e)}, {v(nb + 8 + 4*hd)}")
        for hd in range(2): A(f"v_rcp_f32 {v(nb + 8 + 4*hd)}, {v(nb + 8 + 4*hd)}")
        for hd in range(2):
            for i in range(4): A(f"v_mul_f32 {v(nb + 4*hd + i)}, {v(nb + 4*hd + i)}, {v(nb + 8 + 4*hd)}")
        for jx in range(4): A(cvt(nb + 16 + jx, nb + 2*jx, nb + 2*jx + 1))
        A(f"global_store_dwordx4 v0, {v(nb + 16, 4)}, {s(S_P1,2)} sc1")
        A(adv(S_P1, 16384))
    A("s_lshl_b32 s73, s70, 7"); A("s_lshl_b32 s72, s71, 2"); A("s_add_u32 s73, s73, s72"); wsptr(A, S_FL, 73, F_A2)
    A("s_waitcnt vmcnt(0)")
    A("s_barrier")
    post_flag(A, 1)
    A("s_lshl_b32 s73, s70, 7"); wsptr(A, S_FL, 73, F_A2)
    A(f"v_and_b32 {v(vF)}, 12, {v(vF)}")
    spin(A, f"global_load_dword {v(P_T)}, {v(vF)}, {s(S_FL,2)} sc1", f"v_cmp_eq_u32 vcc, 0, {v(P_T)}", 4)
    A("s_lshl_b32 s73, s70, 18"); wsptr(A, S_P0, 73, WS_AO + 4096)
    A("s_lshl_b32 s73, s70, 19"); A("s_lshl_b32 s72, s74, 6"); A("s_add_u32 s73, s73, s72")
    A(f"s_add_u32 {s(sOut)}, s88, s73"); A(f"s_addc_u32 {s(sOut+1)}, s89, 0")
    def ld(buf):
        for i in range(16):
            A(f"global_load_dwordx4 {v(B0 + 64*buf + 4*i, 4)}, v0, {s(S_P0,2)} offset:{1024*(i&7) - 4096} sc1")
            if i & 7 == 7: A(adv(S_P0, 8192))
    ld(0)
    A(f"s_mov_b32 {s(S_CNTU)}, 0")
    L = A.newlabel("awo")
    A.label(L)
    for buf in range(2):
        ld(1 - buf)
        A("s_waitcnt vmcnt(16)")
        for ks in range(16):
            for x in range(2):
                A(MF(N + 4*x, WO + 16*(ks >> 1) + 8*x + 4*(ks & 1), B0 + 64*buf + 4*ks, N + 4*x if ks else None))
        A("s_nop 7")
        for jx in range(4): A(cvt(N + 8 + jx, N + 2*jx, N + 2*jx + 1))
        A(f"global_store_dwordx4 {v(vOUT)}, {v(N + 8, 4)}, {s(sOut,2)}")
        A(adv(sOut, 16 * 2048))
    A(f"s_add_u32 {s(S_CNTU)}, {s(S_CNTU)}, 1")
    A(f"s_cmp_lt_u32 {s(S_CNTU)}, 8")
    A(f"s_cbranch_scc1 {L}")
    A("s_endpgm")
```

```python
from asmlib import *
from common import *
import math

L_KX, L_VX, L_MS, L_QO, L_KM, L_FL, L_WL = 0, 8192, 16384, 24576, 28928, 31104, 31360
QO_RS = 136
MEM_SZ = 65536
MEM_CP = 8192 + 2048
V_L16, V_IDX, V_PST, V_PUB, V_QW, V_KW, V_QR, V_KR, V_WL, V_L4, V_T0, V_T1 = range(12)
V_SEL = 12
V_M, V_X, V_VB, V_A, V_VA, V_H = 16, 48, 80, 96, 112, 120
V_W = 128
S_WQ, S_WK, S_WV, S_WO = 8, 12, 16, 20
S_AUX = 24
S_STEP = 34
S_PST = 8
S_PLD = 36
S_PCL = 38
S_MLD = 40
S_MPUB = 42
S_KV = 44
S_KV2 = 46
S_KMO = 12
S_FQ = 14
S_FC = 16
S_FM = 18
S_HF = 52
S_ONE = 54
S_ONEZ = 56
S_C = 58
S_NC = 60
S_CNT = 70
S_TM0 = 72
S_ACC = 88

def wslot(n): return V_W + 16 * n

def SM(acc, A, B, hi=False):
    return f"v_smfmac_f32_16x16x64_bf16 {r(acc,4)}, {r(A,4)}, {r(B,8)}, {v(V_IDX)}" + (" abid:1" if hi else "")
def MF(D, A, B, C=None):
    return f"v_mfma_f32_16x16x32_bf16 {r(D,4)}, {r(A,4)}, {r(B,4)}, " + ("0" if C is None else r(C,4))
def ldsrd(dst, addr, off): return f"ds_read_b128 {r(dst,4)}, {v(addr)} offset:{off}"
def zero2(reg): return f"v_mov_b64 {v(reg,2)}, 0"

def slot_plan(w):
    f = 2 * w
    res = []
    for kk in range(8):
        if kk != f: res.append(("q", kk))
        if kk != f: res.append(("k", kk))
    for kk in range(8): res.append(("v", kk))
    res += [("o", 1, 0), ("o", 1, 1)]
    assert len(res) == 24
    reg = {k: wslot(i) for i, k in enumerate(res)}
    ldsl = [("q", f), ("k", f), ("o", 0, 0), ("o", 0, 1), ("o", 2, 0), ("o", 2, 1), ("o", 3, 0), ("o", 3, 1)]
    return reg, res, ldsl

def emit_loader(A, w, hooks):
    vDq, vDo, vTq, vTo = V_H, V_H + 1, V_H + 2, V_H + 3
    reg, res, ldsl = slot_plan(w)
    seq = [(k, ("r", reg[k])) for k in res] + [(k, ("l", i)) for i, k in enumerate(ldsl)]
    base = L_WL + w * 32768
    t = V_A
    A(f"v_lshrrev_b32 {v(t)}, 4, {v(V_L16)}")
    A(f"v_lshrrev_b32 {v(t+1)}, 2, {v(t)}")
    A(f"v_and_b32 {v(t+2)}, 3, {v(t)}")
    A(f"s_lshl_b32 {s(S_T)}, {s(S_H)}, 8")
    A(f"s_add_u32 {s(S_T)}, {s(S_T)}, {w*64}")
    A(f"v_lshlrev_b32 {v(vDq)}, 13, {v(t+1)}")
    A(f"v_lshl_add_u32 {v(vDq)}, {v(t+2)}, 4, {v(vDq)}")
    A(f"v_add_u32 {v(vDq)}, {s(S_T)}, {v(vDq)}")
    A(f"s_lshl_b32 {s(S_T)}, {s(S_H)}, 17")
    A(f"s_add_u32 {s(S_T)}, {s(S_T)}, {w*64}")
    A(f"v_lshlrev_b32 {v(vDo)}, 10, {v(t+1)}")
    A(f"v_lshl_add_u32 {v(vDo)}, {v(t+2)}, 4, {v(vDo)}")
    A(f"v_add_u32 {v(vDo)}, {s(S_T)}, {v(vDo)}")
    A(f"v_lshrrev_b32 {v(t+3)}, 4, {v(t)}")
    A(f"v_and_b32 {v(t+4)}, 3, {v(t+1)}")
    A(f"v_and_b32 {v(t+5)}, 1, {v(t+4)}")
    A(f"v_lshlrev_b32 {v(vTq)}, 4, {v(t+5)}")
    A(f"v_lshrrev_b32 {v(t+5)}, 1, {v(t+3)}")
    A(f"v_lshl_add_u32 {v(vTq)}, {v(t+5)}, 3, {v(vTq)}")
    A(f"v_lshrrev_b32 {v(t+5)}, 1, {v(t+4)}")
    A(f"v_lshl_add_u32 {v(vTq)}, {v(t+5)}, 2, {v(vTq)}")
    A(f"v_and_b32 {v(t+5)}, 1, {v(t+3)}")
    A(f"v_lshl_add_u32 {v(vTq)}, {v(t+5)}, 1, {v(vTq)}")
    A(f"v_lshlrev_b32 {v(vTq)}, 6, {v(vTq)}")
    A(f"v_lshl_add_u32 {v(vTq)}, {v(t+2)}, 3, {v(vTq)}")
    A(f"v_add_u32 {v(vTq)}, {base}, {v(vTq)}")
    A(f"v_and_b32 {v(t+5)}, 1, {v(t+4)}")
    A(f"v_lshlrev_b32 {v(t+5)}, 4, {v(t+5)}")
    A(f"v_lshl_add_u32 {v(vTo)}, {v(t+3)}, 1, {v(t+5)}")
    A(f"v_lshlrev_b32 {v(vTo)}, 6, {v(vTo)}")
    A(f"v_lshrrev_b32 {v(t+5)}, 1, {v(t+4)}")
    A(f"v_lshl_add_u32 {v(vTo)}, {v(t+5)}, 5, {v(vTo)}")
    A(f"v_lshl_add_u32 {v(vTo)}, {v(t+2)}, 3, {v(vTo)}")
    A(f"v_add_u32 {v(vTo)}, {base}, {v(vTo)}")
    def issue(n):
        key = seq[n][0]
        for i in range(4):
            A(f"s_mov_b32 m0, {base + (n % 8) * 4096 + i * 1024}")
            if key[0] == "o":
                so = (64 * key[2] + 16 * i) * 1024 + key[1] * 256
                srd, vd = S_WO, vDo
            else:
                so = (64 * key[1] + 16 * i) * 8192
                srd, vd = {"q": S_WQ, "k": S_WK, "v": S_WV}[key[0]], vDq
            A(f"s_mov_b32 {s(S_T)}, {so}")
            A(f"buffer_load_dwordx4 {v(vd)}, {s(srd,4)}, {s(S_T)} offen lds")
    def consume(n):
        key, dest = seq[n]
        dst = dest[1] if dest[0] == "r" else V_M
        sl = (n % 8) * 4096
        for x in range(2):
            for part in range(2):
                for u in range(2):
                    if key[0] == "o":
                        off, ad = sl + (32 * x + 8 * part + u) * 64, vTo
                    else:
                        off, ad = sl + (32 * part + u) * 64 + x * 32, vTq
                    A(f"ds_read_b64_tr_b16 {r(dst + 8*x + 4*part + 2*u, 2)}, {v(ad)} offset:{off}")
        A("s_waitcnt lgkmcnt(0)")
        if dest[0] == "l":
            assert dest[1] == n % 8
            for p in range(4):
                A(f"ds_write_b128 {v(V_WL)}, {v(V_M + 4*p, 4)} offset:{sl + p*1024}")
            A("s_waitcnt lgkmcnt(0)")
    cnt = [0]; last = {}
    def issue2(n):
        issue(n); cnt[0] += 4; last[n] = cnt[0]
    for n in range(8): issue2(n)
    for n in range(32):
        A(f"s_waitcnt vmcnt({min(63, cnt[0] - last[n])})")
        consume(n)
        if n in hooks: cnt[0] += hooks[n]()
        if n + 8 < 32: issue2(n + 8)

def chain_consts(A, w):
    t = V_A
    A(f"v_lshrrev_b32 {v(t)}, 4, {v(V_L16)}")
    A(f"v_and_b32 {v(t+1)}, 15, {v(t)}")
    A(f"v_lshrrev_b32 {v(t+2)}, 4, {v(t)}")
    A(f"v_lshlrev_b32 {v(V_L4)}, 2, {v(t)}")
    A(f"v_add_u32 {v(V_WL)}, {L_WL + w*32768}, {v(V_L16)}")
    A(f"s_mov_b32 {s(S_HF)}, 0xcccccccc")
    A(f"s_mov_b32 {s(S_HF+1)}, 0xcccccccc")
    A(f"v_mov_b32 {v(t+3)}, 0xe4844444")
    A(f"v_mov_b32 {v(t+4)}, 0xee9eeeee")
    A(f"v_cndmask_b32 {v(t+5)}, {v(t+3)}, {v(t+4)}, {s(S_HF,2)}")
    A(f"v_mov_b32 {v(t+3)}, 0x84e44444")
    A(f"v_mov_b32 {v(t+4)}, 0x9eeeeeee")
    A(f"v_cndmask_b32 {v(t+6)}, {v(t+3)}, {v(t+4)}, {s(S_HF,2)}")
    A(f"v_cmp_lt_u32 vcc, 31, {v(t)}")
    A("s_nop 1")
    A(f"v_cndmask_b32 {v(V_IDX)}, {v(t+5)}, {v(t+6)}, vcc")
    A(f"s_lshl_b32 {s(S_T)}, {s(S_H)}, 6")
    A(f"s_add_u32 {s(S_T)}, {s(S_T)}, {8*w*PART_JS}")
    A(f"v_mul_u32_u24 {v(V_PST)}, {PART_JS}, {v(t+2)}")
    A(f"v_lshl_add_u32 {v(V_PST)}, {v(t+1)}, 2, {v(V_PST)}")
    A(f"v_add_u32 {v(V_PST)}, {s(S_T)}, {v(V_PST)}")
    A(f"v_mul_u32_u24 {v(V_PUB)}, {MEM_CP}, {v(t+2)}")
    A(f"v_lshrrev_b32 {v(t+3)}, 3, {v(t+1)}")
    A(f"v_lshl_add_u32 {v(V_PUB)}, {v(t+3)}, 8, {v(V_PUB)}")
    A(f"v_bfe_u32 {v(t+3)}, {v(t+1)}, 2, 1")
    A(f"v_lshl_add_u32 {v(V_PUB)}, {v(t+3)}, 5, {v(V_PUB)}")
    A(f"v_and_b32 {v(t+3)}, 3, {v(t+1)}")
    A(f"v_lshl_add_u32 {v(V_PUB)}, {v(t+3)}, 2, {v(V_PUB)}")
    A(f"s_add_u32 {s(S_T+2)}, {s(S_WS)}, {WS_XCH + 0x1fffff}")
    A(f"s_addc_u32 {s(S_T+3)}, {s(S_WS+1)}, 0")
    A(f"s_and_b32 {s(S_T+2)}, {s(S_T+2)}, 0xffe00000")
    A(f"s_mul_i32 {s(S_PLD)}, {s(S_H)}, {PART_JS}")
    A(f"s_add_u32 {s(S_PLD)}, {s(S_PLD)}, {w*2048}")
    A(f"s_add_u32 {s(S_PLD)}, {s(S_PLD)}, {s(S_T+2)}")
    A(f"s_xor_b32 {s(S_PCL)}, {s(S_PLD)}, {PART_SZ}")
    A(f"s_add_u32 {s(S_MLD)}, {s(S_T+2)}, {0x100000 + w*2048}")
    A(f"s_lshr_b32 {s(S_T)}, {s(S_H)}, 3")
    A(f"s_lshl_b32 {s(S_T)}, {s(S_T)}, 9")
    A(f"s_and_b32 {s(S_T+1)}, {s(S_H)}, 3")
    A(f"s_lshl_b32 {s(S_T+1)}, {s(S_T+1)}, 6")
    A(f"s_add_u32 {s(S_T)}, {s(S_T)}, {s(S_T+1)}")
    A(f"s_and_b32 {s(S_T+1)}, {s(S_H)}, 4")
    A(f"s_lshl_b32 {s(S_T+1)}, {s(S_T+1)}, 2")
    A(f"s_add_u32 {s(S_T)}, {s(S_T)}, {s(S_T+1)}")
    A(f"s_add_u32 {s(S_MPUB)}, {s(S_MLD)}, {s(S_T)}")
    A(f"s_xor_b32 {s(S_MPUB)}, {s(S_MPUB)}, {MEM_SZ}")
    A(f"s_and_b32 {s(S_T)}, {s(S_H)}, 3")
    A(f"s_mul_i32 {s(S_T)}, {s(S_T)}, {MEM_CP}")
    A(f"s_add_u32 {s(S_MLD)}, {s(S_MLD)}, {s(S_T)}")
    for x in (S_PLD, S_PCL, S_MLD, S_MPUB): A(f"s_mov_b32 {s(x+1)}, {s(S_T+3)}")
    A(f"v_mul_u32_u24 {v(V_QW)}, {2*QO_RS*4}, {v(t+2)}")
    A(f"v_lshl_add_u32 {v(V_QW)}, {v(t+1)}, 2, {v(V_QW)}")
    A(f"v_add_u32 {v(V_QW)}, {L_QO + 64*w}, {v(V_QW)}")
    A(f"v_lshrrev_b32 {v(t+3)}, 2, {v(t+1)}")
    A(f"v_and_b32 {v(t+4)}, 1, {v(t+1)}")
    A(f"v_lshl_add_u32 {v(t+5)}, {v(t+3)}, 1, {v(t+4)}")
    A(f"v_mul_u32_u24 {v(V_QR)}, {QO_RS*4}, {v(t+5)}")
    A(f"v_lshl_add_u32 {v(V_QR)}, {v(t+2)}, 4, {v(V_QR)}")
    A(f"v_add_u32 {v(V_QR)}, {L_QO}, {v(V_QR)}")
    A(f"v_mul_u32_u24 {v(V_KR)}, 272, {v(t+2)}")
    A(f"v_lshl_add_u32 {v(V_KR)}, {v(t+1)}, 4, {v(V_KR)}")
    A(f"v_add_u32 {v(V_KR)}, {L_KM}, {v(V_KR)}")
    A(f"v_lshrrev_b32 {v(t+5)}, 3, {v(t+1)}")
    A(f"v_mul_u32_u24 {v(V_KW)}, 272, {v(t+5)}")
    A(f"v_and_b32 {v(t+5)}, 1, {v(t+2)}")
    A(f"v_lshl_add_u32 {v(V_KW)}, {v(t+5)}, 7, {v(V_KW)}")
    A(f"v_lshrrev_b32 {v(t+5)}, 1, {v(t+2)}")
    A(f"v_lshl_add_u32 {v(V_KW)}, {v(t+5)}, 6, {v(V_KW)}")
    A(f"v_lshl_add_u32 {v(V_KW)}, {v(t+4)}, 5, {v(V_KW)}")
    A(f"v_bfe_u32 {v(t+5)}, {v(t+1)}, 1, 2")
    A(f"v_lshl_add_u32 {v(V_KW)}, {v(t+5)}, 2, {v(V_KW)}")
    A(f"v_add_u32 {v(V_KW)}, {L_KM + (w>>1)*1088 + 2*(w&1)*272}, {v(V_KW)}")
    A(f"v_lshlrev_b32 {v(t+6)}, 4, {v(t+4)}")
    A(f"v_mov_b32 {v(t+7)}, 0x3f80")
    for d in range(4):
        A(f"v_lshlrev_b32 {v(V_SEL+d)}, {v(t+6)}, {v(t+7)}")
    A(f"s_mov_b32 {s(S_ONE)}, 0x3f803f80")
    A(f"s_mov_b32 {s(S_ONE+1)}, 0x3f803f80")
    A(f"s_mov_b32 {s(S_ONEZ)}, 0x3f803f80")
    A(f"s_mov_b32 {s(S_ONEZ+1)}, 0")
    import struct
    c = (128 ** -0.5) * math.log2(math.e)
    cb = struct.unpack("<I", struct.pack("<f", c))[0]
    A(f"s_mov_b32 {s(S_C)}, {cb:#x}")
    A(f"s_mov_b32 {s(S_C+1)}, {cb:#x}")
    A(f"s_mov_b32 {s(S_NC)}, {cb | 0x80000000:#x}")
    A(f"s_mov_b32 {s(S_CNT)}, 0")
    A(f"s_mov_b32 {s(S_CNT+1)}, 0")
    A(f"s_mov_b32 {s(S_STEP)}, 0")
    A(f"s_lshl_b32 {s(S_T)}, {s(S_H)}, 20")
    A(f"s_add_u32 {s(S_T)}, {s(S_T)}, {WS_KV + w*2048}")
    A(f"s_add_u32 {s(S_KV)}, {s(S_WS)}, {s(S_T)}")
    A(f"s_addc_u32 {s(S_KV+1)}, {s(S_WS+1)}, 0")
    A(f"s_add_u32 {s(S_KV2)}, {s(S_KV)}, 8192")
    A(f"s_addc_u32 {s(S_KV2+1)}, {s(S_KV+1)}, 0")

def chain_consts2(A, w, cfg):
    A(f"s_and_b32 {s(S_T+2)}, {s(S_MPUB)}, 0xffe00000")
    for tt in range(2):
        A(f"s_add_u32 {s(S_PST+2*tt)}, {s(S_T+2)}, {4*tt*PART_JS + 4096}")
        A(f"s_mov_b32 {s(S_PST+2*tt+1)}, {s(S_MPUB+1)}")
    A(f"s_lshl_b32 {s(S_T)}, {s(S_H)}, 7")
    A(f"s_add_u32 {s(S_FQ)}, {s(S_WS)}, {s(S_T)}")
    A(f"s_addc_u32 {s(S_FQ+1)}, {s(S_WS+1)}, 0")
    A(f"s_add_u32 {s(S_FC)}, {s(S_FQ)}, {F_C - F_Q}")
    A(f"s_addc_u32 {s(S_FC+1)}, {s(S_FQ+1)}, 0")
    A(f"s_mov_b64 {s(S_FM,2)}, 7")
    A(f"s_lshl_b32 {s(S_T)}, {s(S_H)}, 18")
    A(f"s_add_u32 {s(S_T)}, {s(S_T)}, {WS_KM}")
    A(f"s_add_u32 {s(S_KMO)}, {s(S_WS)}, {s(S_T)}")
    A(f"s_addc_u32 {s(S_KMO+1)}, {s(S_WS+1)}, 0")

def adv(reg, n): return [f"s_add_u32 {s(reg)}, {s(reg)}, {n}", f"s_addc_u32 {s(reg+1)}, {s(reg+1)}, 0"]
def gld4(dst, base, off): return f"global_load_dwordx4 {v(dst,4)}, {v(V_L16)}, {s(base,2)} offset:{off} sc1"
def gst1(addr, dat, base, off, mod): return f"global_store_dword {v(addr)}, {v(dat)}, {s(base,2)} offset:{off} {mod}"
def dma_k(w):
    return [f"s_mov_b32 m0, {L_KX + w*2048}", "s_nop 0",
            f"global_load_lds_dwordx4 {v(V_L16)}, {s(S_KV,2)} sc1",
            f"global_load_lds_dwordx4 {v(V_L16)}, {s(S_KV,2)} offset:1024 sc1"]
def dma_v(w):
    return [f"s_mov_b32 m0, {L_VX + w*2048}", "s_nop 0",
            f"global_load_lds_dwordx4 {v(V_L16)}, {s(S_KV2,2)} sc1",
            f"global_load_lds_dwordx4 {v(V_L16)}, {s(S_KV2,2)} offset:1024 sc1"]

def nops(A, n):
    while n > 0:
        k = min(n, 16); A(f"s_nop {k-1}"); n -= k

def stream(A, mfmas, fill):
    for i, m in enumerate(mfmas):
        A(m)
        for x in fill.get(i, []): A(x)
    assert all(k < len(mfmas) for k in fill)

def chores(w):
    ds = [ldsrd(V_X + 4*n, V_WL, n * 1024) for n in range(8)]
    dsv = []
    for t in range(2):
        dsv.append(f"ds_read_b64 {v(V_VB + 8*t, 2)}, {v(V_L16)} offset:{L_VX + w*2048 + t*1024}")
        dsv.append(f"ds_read_b64 {v(V_VB + 8*t + 4, 2)}, {v(V_L16)} offset:{L_VX + w*2048 + t*1024 + 8}")
    va = [zero2(V_A + 2*i) for i in range(8)] + [zero2(V_VA + 2*i) for i in range(4)] + \
         [zero2(V_VB + 2), zero2(V_VB + 6)]
    return ds, dsv, va

def spread(A, work, gap):
    chunk, work = work[:gap], work[gap:]
    for x in chunk: A(x)
    nops(A, gap - len(chunk))
    return work

def emit_step_loop(A, w, cfg, st):
    reg, res, ldsl = slot_plan(w)
    f0, f1 = 2*w, 2*w + 1
    oth = [(f1 + 1 + i) % 8 for i in range(6)]
    Mc = lambda k: V_M + 4*k
    q0, q1, k0, k1 = V_A, V_A + 4, V_A + 8, V_A + 12
    va0, va1 = V_VA, V_VA + 4
    def Bq(k, t): return (V_X if k == f0 else reg[("q", k)]) + 8*t
    def Bk(k, t): return (V_X + 16 if k == f0 else reg[("k", k)]) + 8*t
    def Bv(k, t): return reg[("v", k)] + 8*t
    budget = [f"s_sub_u32 {s(S_BUD)}, {s(S_BUD)}, 1", f"s_cselect_b64 {s(S_ALIVE,2)}, 0, {s(S_ALIVE,2)}"]
    Lloop, Lexit = (A.newlabel(x) for x in ("step", "exit"))
    D1 = cfg["d1"][w]
    diag = cfg.get("diag")
    tr = 1 if cfg.get("stamps") == 2 else 0
    def stamp(i):
        if cfg.get("stamps") and not cfg.get("fine"): A(f"s_memtime {s(S_TM0+2*i,2)}")
    def add(fill, pos, *ins): fill.setdefault(pos, []).extend(ins)

    A.label(Lloop)
    _start = len(A.lines)
    ds, dsv, va = chores(w)
    h2ld = [gld4(Mc(f0), S_MLD, 0), gld4(Mc(f1), S_MLD, 1024)]
    wk = [f"s_xor_b32 {s(S_PLD)}, {s(S_PLD)}, {PART_SZ}", f"s_xor_b32 {s(S_MPUB)}, {s(S_MPUB)}, {MEM_SZ}"]
    dfr = cfg["defer"][w]
    if dfr >= 1: wk += ds; ds = []
    wk += dsv
    if dfr >= 2: wk += va[6:]; va = va[:6]
    FT = Mc(oth[4])
    Lfq, Lfqb = A.newlabel("fq"), A.newlabel("fqb")
    if w == 0 and cfg["flags"]:
        assert cfg["ba"]
        A(f"ds_read_b32 {v(FT)}, {v(V_L4)} offset:{L_FL}")
        A(f"s_add_u32 {s(S_T)}, {s(S_STEP)}, 1")
        A(f"s_lshl_b32 {s(S_T)}, {s(S_T)}, 2")
        A("s_waitcnt lgkmcnt(0)")
        A.label(Lfqb)
        A(f"v_mad_u32_u24 {v(FT)}, {v(FT)}, 12, {v(V_L4)}")
        A(f"v_cmp_ge_u32 vcc, {s(S_T)}, {v(FT)}")
        A(f"s_and_b64 vcc, vcc, {s(S_FM,2)}")
        A(f"s_cbranch_scc1 {Lfq}")
    nb, na = cfg["nb"][w], cfg["na"][w]
    gap = cfg["pre2a"][w]
    for d in range(nb):
        wk = spread(A, wk, gap); A("\n".join(h2ld)); gap = cfg["gap2"][w]
    if cfg["ba"]: A("s_barrier")
    stamp(0)
    gap = cfg["pre2b"][w]
    for d in range(na):
        wk = spread(A, wk, gap); A("\n".join(h2ld)); gap = cfg["gap2"][w]
    for x in wk: A(x)
    Lh2, Lh2c = A.newlabel("h2"), A.newlabel("h2c")
    m = Mc(f0)
    chk = [f"v_maximum3_f32 {v(V_T0)}, {v(m)}, {v(m+1)}, {v(m+2)}",
           f"v_maximum3_f32 {v(V_T0)}, {v(V_T0)}, {v(m+3)}, {v(m+4)}",
           f"v_maximum3_f32 {v(V_T0)}, {v(V_T0)}, {v(m+5)}, {v(m+6)}",
           f"v_cmp_u_f32 vcc, {v(V_T0)}, {v(m+7)}"]
    msw = [f"ds_write_b128 {v(V_L16)}, {v(Mc(k),4)} offset:{L_MS + k*1024}" for k in (f0, f1)]
    A(f"s_waitcnt vmcnt({2*(nb+na-1)}) lgkmcnt(0)")
    for x in chk + msw: A(x)
    A(f"s_cbranch_vccnz {Lh2}")
    A.label(Lh2c)
    stamp(1)
    qq = lambda k: [SM(q0, Mc(k), Bq(k,0)), SM(q1, Mc(k), Bq(k,1))]
    kk_ = lambda k: [SM(k0, Mc(k), Bk(k,0)), SM(k1, Mc(k), Bk(k,1))]
    vv = lambda k: [SM(va0, Mc(k), Bv(k,0)), SM(va1, Mc(k), Bv(k,1))]
    T0, T1, Tm, PA0 = V_A, V_A + 4, V_A + 8, V_A + 12
    qf = [V_H, V_H + 4, Mc(f0), Mc(f1)]
    kf = [Mc(oth[0]), Mc(oth[1])]
    Kx = lambda kt, ks: V_X + 4*(4*kt + ks)
    mf = qq(f0) + kk_(f0) + qq(f1) + kk_(f1) + vv(f0) + vv(f1)
    for k in oth: mf += qq(k)
    for k in oth: mf += kk_(k)
    for k in oth: mf += vv(k)
    for ks in range(4): mf.append(MF(T0, Kx(0,ks), qf[ks], T0 if ks else None))
    for ks in range(4): mf.append(MF(T1, Kx(1,ks), qf[ks], T1 if ks else None))
    mf += [SM(Tm, kf[0], qf[0]), SM(Tm, kf[1], qf[2])]
    pre, dsq, vmq, post, vaq = {}, {}, {}, {}, {}
    bc = cfg["bc"][w]
    add(pre, bc, "s_waitcnt lgkmcnt(0)", "s_barrier")
    tags = {}
    nods = {cfg["bq"], cfg["b1"], cfg["bk"]} | ({bc} if cfg["bcds"] else set())
    def put_ds(pos, ins, tag=None):
        while pos in dsq or pos in nods: pos += 1
        dsq[pos] = [ins]
        if tag: tags[tag] = pos
        return pos
    for i, k in enumerate(oth): put_ds(bc + i, ldsrd(Mc(k), V_L16, L_MS + k*1024), f"m{i}")
    for i in range(8): put_ds(bc + 6, ldsrd(V_X + 4*i, V_L16, L_KX + i*1024))
    for i, x in enumerate([f"v_add_f32 {v(q0)}, {v(q0)}, {v(q0+2)}", f"v_add_f32 {v(q0+1)}, {v(q0+1)}, {v(q0+3)}",
                           f"v_add_f32 {v(q1)}, {v(q1)}, {v(q1+2)}", f"v_add_f32 {v(q1+1)}, {v(q1+1)}, {v(q1+3)}",
                           f"v_cvt_pk_bf16_f32 {v(q0)}, {v(q0)}, {v(q1)}", f"v_cvt_pk_bf16_f32 {v(q0+1)}, {v(q0+1)}, {v(q1+1)}"]):
        add(vaq, 24 + i, x)
    put_ds(30 + (w & 1), f"ds_write2_b32 {v(V_QW)}, {v(q0)}, {v(q0+1)} offset0:0 offset1:{QO_RS}")
    bq = cfg["bq"]
    for i in range(4): put_ds(bq + i, ldsrd(qf[i], V_QR, 64*i), f"q{i}")
    kc = [f"v_add_f32 {v(k0)}, {v(k0)}, {v(k0+2)}", f"v_add_f32 {v(k0+1)}, {v(k0+1)}, {v(k0+3)}",
          f"v_add_f32 {v(k1)}, {v(k1)}, {v(k1+2)}", f"v_add_f32 {v(k1+1)}, {v(k1+1)}, {v(k1+3)}",
          f"v_cvt_pk_bf16_f32 {v(V_T0)}, {v(k0)}, {v(k1)}", f"v_cvt_pk_bf16_f32 {v(V_T1)}, {v(k0+1)}, {v(k1+1)}"]
    kst = 37 if bq == 36 else 36
    for i, x in enumerate(kc): add(vaq, kst + i, x)
    put_ds(kst + 6 + (w & 1), f"ds_write2_b32 {v(V_KW)}, {v(V_T0)}, {v(V_T1)} offset0:0 offset1:4")
    b1 = cfg["b1"]
    put_ds(b1, ldsrd(kf[0], V_KR, 0)); put_ds(b1 + 1, ldsrd(kf[1], V_KR, 1088), "k1")
    zs = [zero2(Tm), zero2(Tm+2), zero2(PA0), zero2(PA0+2)]
    pos = kst + 6
    for x in zs:
        while pos == b1: pos += 1
        add(vaq, pos, x); pos += 1
    wo0 = [ldsrd(V_X + 4*i, V_WL, 2*4096 + i*1024) for i in range(8)]
    wo1 = {k: ldsrd(Mc(k), V_WL, 4*4096 + k*1024) for k in range(8)}
    wo3 = [ldsrd(V_X + 4*i, V_WL, 6*4096 + i*1024) for i in range(8)]
    for j, e in ((2, 41), (3, 43), (4, 45), (5, 47)): put_ds(e, wo1[oth[j]])
    nwo0 = cfg["nwo0"]
    for i in range(nwo0): put_ds(48 + i, wo0[i])
    assert max(dsq) <= 57
    mx, mb = V_T0, V_T1
    vlist = [(49, f"v_add_f32 {v(va0)}, {v(va0)}, {v(va0+2)}"), (49, f"v_add_f32 {v(va0+1)}, {v(va0+1)}, {v(va0+3)}"),
             (49, f"v_add_f32 {v(va1)}, {v(va1)}, {v(va1+2)}"), (49, f"v_add_f32 {v(va1+1)}, {v(va1+1)}, {v(va1+3)}"),
             (49, f"v_cvt_pk_bf16_f32 {v(V_VB+2)}, {v(va0)}, {v(va0+1)}"), (49, f"v_cvt_pk_bf16_f32 {v(V_VB+10)}, {v(va1)}, {v(va1+1)}"),
             (49, f"v_cvt_pk_bf16_f32 {v(V_VB+14)}, {v(va1)}, {v(va1+1)}"), (49, f"v_cvt_pk_bf16_f32 {v(V_VB+6)}, {v(va0)}, {v(va0+1)}"),
             (53, f"v_max3_f32 {v(mx)}, {v(T0)}, {v(T0+1)}, {v(T0+2)}"),
             (53, f"v_cndmask_b32 {v(T0)}, {v(T0)}, {v(T0+2)}, {s(S_HF,2)}"),
             (53, f"v_cndmask_b32 {v(T0+1)}, {v(T0+1)}, {v(T0+3)}, {s(S_HF,2)}"),
             (57, f"v_max3_f32 {v(mx)}, {v(mx)}, {v(T0+3)}, {v(T1)}"),
             (57, f"v_max3_f32 {v(mx)}, {v(mx)}, {v(T1+1)}, {v(T1+2)}"),
             (57, f"v_cndmask_b32 {v(T0+2)}, {v(T1)}, {v(T1+2)}, {s(S_HF,2)}"),
             (57, f"v_cndmask_b32 {v(T0+3)}, {v(T1+1)}, {v(T1+3)}, {s(S_HF,2)}"),
             (57, f"v_max_f32 {v(mx)}, {v(mx)}, {v(T1+3)}")]
    SENT = V_H + 2
    add(vaq, 2, f"v_mov_b32 {v(SENT)}, -1")
    add(post, 3, dma_v(w)[0])
    def put_vm(pos, ins):
        while pos in vmq or pos in pre or pos in (bq, b1, cfg["bk"], 11, 13, 17) or (pos in vaq and pos in dsq): pos += 1
        vmq[pos] = [ins]; return pos
    clr = [gst1(V_PUB, SENT, S_MPUB, 0, st)]
    put_vm(bc + 1, clr[0])
    skv = cfg["skv"]
    pv = cfg["pv"] + (w * skv) // 4
    p1 = put_vm(pv, dma_v(w)[2]); p2 = put_vm(p1 + skv, dma_v(w)[3]); add(post, p2, dma_k(w)[0])
    pos = cfg["pclr"] + (w * cfg["sclr"]) // 4
    for i in range(8): pl = put_vm(pos, gst1(V_L4, SENT, S_PCL, 256*i, st)); pos += cfg["sclr"]
    assert pl < bq
    bk = cfg["bk"]
    if bk < bq: add(pre, bk, "s_waitcnt lgkmcnt(0)", "s_barrier"); assert bk > bc + 13 and bk not in vmq
    p3 = put_vm(max(min(bk, bq) + 1 + (w * skv) // 4, p2 + 1), dma_k(w)[2]); p4 = put_vm(p3 + skv, dma_k(w)[3])
    if cfg["flags"]:
        if w == 0:
            add(post, p4, f"s_mov_b32 m0, {L_FL}")
            put_vm(p4 + 1, f"global_load_lds_dword {v(V_L4)}, {s(S_FQ,2)} sc1")
        if w == 1:
            add(vaq, 1, f"v_mov_b32 {v(V_T0)}, {s(S_STEP)}")
            pf = 20
            while pf in vmq or pf in dsq or pf in post or pf in vaq: pf += 1
            vmq[pf] = ["s_mov_b64 exec, 1\n" + gst1(V_VB + 11, V_T0, S_FC, 0, 'sc1') + "\ns_mov_b64 exec, -1"]
            assert pf < 36
    pubk = [gst1(V_L4, V_T0+b, S_KMO, (2*w+b)*256, 'sc1') for b in range(2)]
    pk1 = put_vm(kst + 6, pubk[0]); pk2 = put_vm(pk1 + 1, pubk[1])
    assert pk2 < 53
    if tr:
        for i in range(8): add(vaq, 12 + i, f"v_writelane_b32 {v(V_H)}, {s(S_TM0+2*i)}, {i}")
        add(vaq, 20, f"v_writelane_b32 {v(V_H)}, {s(S_CNT)}, 8")
        add(vaq, 21, f"v_writelane_b32 {v(V_H)}, {s(S_CNT+1)}, 9")
        put_vm(26, gst1(V_L4, V_H, S_ACC, 0, ""))
    pos = 49; vi = 0; vdone = {}
    while vi < len(vlist) and pos < 57:
        cap = (1 if (pos in dsq or pos in vmq or pos >= 56) else 2) - len(vaq.get(pos, []))
        while cap > 0 and vi < len(vlist) and vlist[vi][0] <= pos:
            add(vaq, pos, vlist[vi][1]); vdone[vi] = pos; vi += 1; cap -= 1
        pos += 1
    tailv = [x[1] for x in vlist[vi:]]
    pubv = [gst1(V_L4, V_VB + 8*t + 2, S_KMO, 2048 + (2*w+t)*256, 'sc1') for t in range(2)]
    assert vdone[5] < 56
    add(vmq, 56, pubv[0]); add(vmq, 57, pubv[1])
    def nds(lo, hi): return sum(1 for p in dsq if lo < p <= hi)
    for j, jj in ((0, 0), (1, 2), (3, 5)):
        add(post, 11 + 2*j, f"s_waitcnt lgkmcnt({nds(tags[f'm{jj}'], 11 + 2*j)})")
    nvb = sum(len(vmq[p]) for p in vmq if p < bq)
    add(pre, bq, f"s_waitcnt vmcnt({nvb}) lgkmcnt(0)", "s_barrier")
    kwp = [p for p in dsq if dsq[p][0].startswith(f"ds_write2_b32 {v(V_KW)}")][0]
    add(pre, b1, f"s_waitcnt lgkmcnt({nds(kwp, b1 - 1)})", "s_barrier")
    if b1 > 47: add(post, 47, f"s_waitcnt lgkmcnt({nds(tags['q3'], 47)})")
    add(post, 55, f"s_waitcnt lgkmcnt({nds(tags['k1'], 55)})")
    add(post, 22, f"s_cmp_eq_u32 {s(S_STEP)}, 63")
    fill = {}
    for i in range(len(mf)):
        for d in (pre, dsq, vmq, post, vaq):
            if i in d: add(fill, i, *d[i])
        if i == 35 and cfg.get("stamps") and not cfg.get("fine"): add(fill, i, f"s_memtime {s(S_TM0+4,2)}")
        if i == 50 and cfg.get("stamps") and not cfg.get("fine"): add(fill, i, f"s_memtime {s(S_TM0+6,2)}")
    kq = len(A.lines)
    stream(A, mf, fill)
    used = len(fill.get(57, []))
    lead = max(0, 2 - used)
    nops(A, lead)
    extra = [zero2(va1), zero2(va1+2)]
    while len(tailv) + used + lead < 8 and extra: tailv.append(extra.pop(0))
    for x in tailv: A(x)
    nops(A, 8 - len(tailv) - used - lead)
    A(f"v_pk_add_f32 {v(Tm,2)}, {v(Tm,2)}, {v(Tm+2,2)}")
    A(f"v_max3_f32 {v(mb)}, {v(mx)}, {v(Tm)}, {v(Tm+1)}")
    A(f"v_max3_f32 {v(mx)}, {v(mx)}, {v(Tm)}, {v(Tm+1)}")
    A(f"v_cndmask_b32 {v(Tm)}, {v(Tm)}, {v(Tm+1)}, {s(S_HF,2)}")
    A(f"v_mov_b64 {v(V_H,2)}, {s(S_ONE,2)}")
    A(f"v_permlane32_swap_b32 {v(mx)}, {v(mb)}")
    A(f"v_max_f32 {v(Tm+2)}, {v(mx)}, {v(mb)}")
    A(f"v_max_f32 {v(Tm+3)}, {v(mx)}, {v(mb)}")
    A(f"v_mov_b64 {v(V_H+2,2)}, {s(S_ONEZ,2)}")
    A(extra.pop(0) if extra else "s_nop 0")
    A(f"v_permlane16_swap_b32 {v(Tm+2)}, {v(Tm+3)}")
    A(f"v_max_f32 {v(mx)}, {v(Tm+2)}, {v(Tm+3)}")
    A(f"v_mul_f32 {v(mx)}, {s(S_NC)}, {v(mx)}")
    A(f"v_pk_fma_f32 {v(T0,2)}, {v(T0,2)}, {s(S_C,2)}, {v(mx,2)} op_sel_hi:[1,1,0]")
    A(f"v_pk_fma_f32 {v(T0+2,2)}, {v(T0+2,2)}, {s(S_C,2)}, {v(mx,2)} op_sel_hi:[1,1,0]")
    A(f"v_fma_f32 {v(Tm)}, {v(Tm)}, {s(S_C)}, {v(mx)}")
    P = T1
    A(f"v_exp_f32 {v(T0)}, {v(T0)}")
    A(f"v_exp_f32 {v(T0+1)}, {v(T0+1)}")
    A(f"v_exp_f32 {v(T0+2)}, {v(T0+2)}")
    A(f"v_exp_f32 {v(T0+3)}, {v(T0+3)}")
    A(f"v_exp_f32 {v(Tm)}, {v(Tm)}")
    A(f"v_cvt_pk_bf16_f32 {v(P)}, {v(T0)}, {v(T0+1)}")
    A(f"v_cvt_pk_bf16_f32 {v(P+2)}, {v(T0+2)}, {v(T0+3)}")
    A(f"v_cvt_pk_bf16_f32 {v(P+1)}, {v(Tm)}, 0")
    A(f"v_cvt_pk_bf16_f32 {v(P+3)}, {v(Tm)}, 0")
    A(extra.pop(0) if extra else "s_nop 0"); A("s_nop 0")
    stamp(4)
    SU = va0
    mf = [MF(SU, P, V_H), SM(PA0, P, V_VB, True), SM(va1, P, V_VB + 8, True)]
    w0r = wo0[nwo0:]
    fill = {0: w0r[:2], 1: w0r[2:3], 2: (w0r[3:4] + ["s_nop 0", "s_nop 0"])[:2]}
    w0r = w0r[4:]
    stream(A, mf, fill)
    A(f"v_add_f32 {v(SU)}, {v(SU)}, {v(SU+2)}")
    A(f"v_add_f32 {v(SU+1)}, {v(SU+1)}, {v(SU+3)}")
    A(f"v_rcp_f32 {v(SU)}, {v(SU)}")
    A(f"v_rcp_f32 {v(SU+1)}, {v(SU+1)}")
    A(f"v_pk_add_f32 {v(PA0,2)}, {v(PA0,2)}, {v(PA0+2,2)}")
    A(f"v_pk_mul_f32 {v(PA0,2)}, {v(PA0,2)}, {v(SU,2)}")
    A(f"v_pk_add_f32 {v(va1,2)}, {v(va1,2)}, {v(va1+2,2)}")
    A(f"v_pk_mul_f32 {v(va1,2)}, {v(va1,2)}, {v(SU,2)}")
    A(f"v_cvt_pk_bf16_f32 {v(V_T0)}, {v(PA0)}, {v(va1)}")
    A(f"v_cvt_pk_bf16_f32 {v(V_T1)}, {v(PA0+1)}, {v(va1+1)}")
    A(f"ds_write2_b32 {v(V_QW)}, {v(V_T0)}, {v(V_T1)} offset0:64 offset1:{QO_RS+64}")
    rest1 = [wo1[k] for k in sorted([f0, f1, oth[0], oth[1]])]
    acc = [va0, va1, V_VB, V_VB + 4]
    for x in acc:
        A(zero2(x)); A(zero2(x+2))
    assert len(w0r) <= 1
    mid = w0r + rest1[:1]
    for x in mid: A(x)
    A(f"s_cbranch_scc1 {Lexit}")
    lastclr = max(i for i in range(kq, len(A.lines)) if A.lines[i] in [c.strip() for c in clr])
    ncl = sum(1 for x in A.lines[lastclr+1:] if x.startswith("global_"))
    A(f"s_waitcnt vmcnt({ncl}) lgkmcnt({len(mid)})")
    A("s_barrier")
    of = [V_A + 4*i for i in range(4)]
    for i in range(4): A(ldsrd(of[i], V_QR, 256 + 64*i))
    stamp(5)
    Bo = lambda q, ks: {0: V_X, 2: V_M, 1: reg[("o",1,0)], 3: V_X}[q] + 8*ks
    assert reg[("o",1,1)] == reg[("o",1,0)] + 16
    mf = [SM(acc[q], of[ks], Bo(q, ks)) for q in range(4) for ks in range(4)]
    def cv(q, b): return f"v_cvt_pk_bf16_f32 {v(acc[q]+b)}, {v(acc[q]+b)}, {v(acc[q]+b+2)}"
    def stp(q, b): return gst1(V_PST, acc[q]+b, S_PST + 2*b, q*2048 - 4096, st)
    h1ld = [f"global_load_dword {v(V_H+i)}, {v(V_L4)}, {s(S_PLD,2)} offset:{256*i} sc1" for i in range(8)]
    A("s_waitcnt lgkmcnt(3)")
    fill = {0: [rest1[1], "s_waitcnt lgkmcnt(3)"], 1: [rest1[2], "s_waitcnt lgkmcnt(3)"], 2: [rest1[3], "s_waitcnt lgkmcnt(3)"],
            3: [wo3[0]], 4: [wo3[1]], 5: [wo3[2], cv(0,0)], 6: [stp(0,0), cv(0,1)],
            7: [stp(0,1), wo3[3], "s_waitcnt lgkmcnt(4)"], 8: [wo3[4], wo3[5]], 9: [wo3[6], cv(1,0)], 10: [stp(1,0), cv(1,1)],
            11: [stp(1,1), wo3[7], "s_waitcnt lgkmcnt(4)"],
            13: ["s_waitcnt lgkmcnt(2)", cv(2,0)], 14: [stp(2,0), "s_waitcnt lgkmcnt(0)", cv(2,1)], 15: [stp(2,1)]}
    e1 = cfg["e1"][w]
    sp = cfg["sp"]
    for pp in (8, 12):
        if pp not in e1 and sp: add(fill, pp, f"s_nop {sp + (2 if pp == 12 else 0)}")
    for pp in e1:
        if pp < 16: fill.setdefault(pp, [])[0:0] = h1ld
    k0_ = len(A.lines)
    stream(A, mf, fill)
    sal = [f"s_xor_b32 {s(S_PST+2*i)}, {s(S_PST+2*i)}, {PART_SZ}" for i in range(2)] + \
          ["\n".join(adv(S_KMO, 4096)), f"s_add_u32 {s(S_STEP)}, {s(S_STEP)}, 1", "\n".join(adv(S_KV, 16384)), "\n".join(adv(S_KV2, 16384)),
           f"s_xor_b32 {s(S_PCL)}, {s(S_PCL)}, {PART_SZ}", f"s_xor_b32 {s(S_MLD)}, {s(S_MLD)}, {MEM_SZ}"]
    if tr: sal.append("\n".join(adv(S_ACC, 256)))
    if 16 in e1:
        A("\n".join(h1ld))
    else:
        A("s_nop 0")
        for x in va[:6]: A(x)
        va = va[6:]
    nops(A, cfg["sp3"])
    A(cv(3,0)); A(cv(3,1)); A(stp(3,0)); A(stp(3,1))
    stamp(6)
    work = []
    while va or sal:
        work += va[:1] + sal[:1]; va = va[1:]; sal = sal[1:]
    work += ds
    natt = len(e1)
    gap = cfg["pre1"][w]
    while natt < D1:
        work = spread(A, work, gap)
        A("\n".join(h1ld))
        natt += 1
        gap = cfg["gap1"][w]
    for x in work: A(x)
    vmo = [x for x in A.lines[k0_:] if x.startswith("global_")]
    starts = [i for i, x in enumerate(vmo) if x == h1ld[0]]
    total = len(vmo)
    R = Mc(oth[2])
    def publish():
        A(f"v_cvt_pk_bf16_f32 {v(V_T1)}, {v(R)}, {v(R+1)}")
        A(gst1(V_PUB, V_T1, S_MPUB, 0, st))
        A(f"v_cmp_u_f32 vcc, {v(R)}, {v(R+1)}")
    A(f"s_waitcnt vmcnt({total - starts[0] - 4})")
    A(MF(R, V_SEL, V_H))
    A(f"s_waitcnt vmcnt({total - starts[0] - 8})")
    A(MF(R, V_SEL, V_H + 4, R))
    A("s_nop 7")
    for d in range(cfg["u1"][w]):
        publish()
        if d == 0: stamp(7)
        A(MF(R, V_SEL, V_H)); A(MF(R, V_SEL, V_H + 4, R))
        A(f"s_cbranch_vccz {Lloop}")
        A("\n".join(h1ld))
        if diag: A(f"s_add_u32 {s(S_CNT)}, {s(S_CNT)}, 1")
    Lh1w = A.newlabel("h1w")
    A.label(Lh1w)
    publish()
    if cfg["u1"][w] == 0: stamp(7)
    A(f"s_and_b64 vcc, vcc, {s(S_ALIVE,2)}")
    A(f"s_cbranch_scc0 {Lloop}")
    if cfg.get("fine"):
        cnt = 0; k = _start; fine = list(cfg["fine"])
        while k < len(A.lines):
            if "mfma" in A.lines[k]:
                if cnt in fine:
                    A.lines.insert(k + 1, f"s_memtime {s(S_TM0+2*fine.index(cnt),2)}")
                cnt += 1
            k += 1
    if cfg.get("stamps") == 1:
        k = [i for i in range(_start, len(A.lines)) if A.lines[i].startswith("v_permlane32")][0]
        ins = ["s_cselect_b32 s35, 1, 0"]
        for i in range(8 if not cfg.get("fine") else 1):
            ins += [f"s_sub_u32 {s(S_T)}, {s(S_TM0+2*((i+1)%8))}, {s(S_TM0+2*i)}", f"s_add_u32 {s(S_ACC+i)}, {s(S_ACC+i)}, {s(S_T)}"]
        ins += ["s_cmp_eq_u32 s35, 1"]
        A.lines[k:k] = ins
    A(f"s_waitcnt vmcnt({cfg['f1'][w]})")
    A(MF(R, V_SEL, V_H)); A(MF(R, V_SEL, V_H + 4, R))
    A("\n".join(h1ld))
    A("\n".join(budget))
    if diag: A(f"s_add_u32 {s(S_CNT)}, {s(S_CNT)}, 1")
    A(f"s_branch {Lh1w}")
    if w == 0 and cfg["flags"]:
        A.label(Lfq)
        A(f"global_load_dword {v(FT)}, {v(V_L4)}, {s(S_FQ,2)} sc1")
        A("\n".join(budget))
        A(f"s_and_b64 {s(S_FM,2)}, {s(S_FM,2)}, {s(S_ALIVE,2)}")
        A("s_waitcnt vmcnt(0)")
        A(f"s_branch {Lfqb}")
    A.label(Lh2)
    A("\n".join(h2ld))
    A("\n".join(budget))
    if diag: A(f"s_add_u32 {s(S_CNT+1)}, {s(S_CNT+1)}, 1")
    A(f"s_waitcnt vmcnt({cfg['f2'][w]})")
    for x in chk + msw: A(x)
    A(f"s_and_b64 vcc, vcc, {s(S_ALIVE,2)}")
    A(f"s_cbranch_scc0 {Lh2c}")
    A(f"s_branch {Lh2}")
    for i in range(_start, len(A.lines)):
        ln = A.lines[i]
        if cfg.get("nodma") and ln.startswith("s_add_u32") and ln.endswith(str(16384)): A.lines[i] = ln.replace(str(16384), "0")
        if cfg.get("nopub") and ln.startswith("global_store") and s(S_KMO,2) in ln: A.lines[i] = ln.replace(" sc1", "")
        if cfg.get("nopub") and ln.startswith("s_add_u32") and ln.endswith(str(4096)): A.lines[i] = ln.replace(str(4096), "0")
        if cfg.get("noclr") and ln.startswith("v_mov_b") and ln.endswith(", -1"): A.lines[i] = ln.replace("-1", "0")
    A.label(Lexit)
    return Lloop
```

```python
KA = dict(A_x=0, A_wqkv=8, A_wphi=16, A_wo=24, B_x=32, B_mem0=40, B_Wq=48, B_Wk=56, B_Wv=64, B_Wo=72,
          seg=80, out=88, dbg=96, ws=104)
WS_SIZE = 0x10000000
WS_FLAG = 0x0
F_Q  = 0x0000
F_C  = 0x1000
F_A1 = 0x2000
F_A2 = 0x2400
F_H  = 0x3000
F_O  = 0x4000
WS_XCH = 0x100000
PART_SZ = 0x80000
PART_JS = 8320
WS_KV   = 0x1000000
WS_Q    = 0x3100000
WS_KM   = 0x4200000
KM_HS   = 65 * 4096
WS_O    = 0x5000000
WS_APHI = 0x6000000
WS_AKV  = 0x6400000
WS_AO   = 0x6600000
WS_STAT = 0x8000000
D_TK = [0, 64, 68, 72, 128, 132, 136, 140]
D_OVF = 144
D_ARR = 192
NAME = "concat_heads__linear_kernel_hedgehog__memory_aug_recurrent_mem_tr__prompt"
S_WS = 4
S_DBG = 28
S_H, S_W = 32, 33
S_ALIVE = 48
S_BUD = 50
S_T = 62
BUDGET = 300000
```

```python
import sys
from asmlib import *
from common import *
import chain as C
import bg
from bg import srd, spin, BUD

def arrive(A, vz, vt):
    A(f"v_mov_b32 {v(vt)}, 1")
    A("s_mov_b64 exec, 1")
    A(f"global_atomic_add {v(vz)}, {v(vt)}, {s(S_DBG,2)} offset:{D_ARR}")
    A("s_mov_b64 exec, -1")

def chain_role(A, cfg):
    diag = cfg.get("diag")
    A(f"s_load_dwordx4 s[80:83], s[0:1], {KA['B_Wq']}")
    A(f"s_load_dwordx4 s[84:87], s[0:1], {KA['B_Wv']}")
    A(f"s_load_dwordx2 s[88:89], s[0:1], {KA['B_mem0']}")
    A("s_waitcnt lgkmcnt(0)")
    srd(A, C.S_WQ, 80, 4 << 20); srd(A, C.S_WK, 82, 4 << 20); srd(A, C.S_WV, 84, 4 << 20); srd(A, C.S_WO, 86, 4 << 20)
    srd(A, C.S_AUX, 88, 8192)
    labs = [A.newlabel(f"chain_w{w}") for w in range(4)]
    for w in range(1, 4):
        Ln = A.newlabel("nx")
        A(f"s_cmp_eq_u32 {s(S_W)}, {w}")
        A(f"s_cbranch_scc0 {Ln}")
        A(f"s_branch {labs[w]}")
        A.label(Ln)
    for w in range(4):
        A.label(labs[w])
        t = C.V_X
        A(f"v_bfe_u32 {v(t+2)}, {v(C.V_L16)}, 4, 4")
        A(f"v_lshlrev_b32 {v(t+2)}, 1, {v(t+2)}")
        A(f"s_and_b32 {s(S_T)}, {s(S_H)}, 3")
        A(f"s_lshl_b32 {s(S_T)}, {s(S_T)}, 11")
        A(f"s_bfe_u32 {s(S_T+1)}, {s(S_H)}, 0x10002")
        A(f"s_lshl_b32 {s(S_T+1)}, {s(S_T+1)}, 10")
        A(f"s_add_u32 {s(S_T)}, {s(S_T)}, {s(S_T+1)}")
        A(f"s_lshr_b32 {s(S_T+1)}, {s(S_H)}, 3")
        A(f"s_lshl_b32 {s(S_T+1)}, {s(S_T+1)}, 6")
        A(f"s_add_u32 {s(S_T)}, {s(S_T)}, {s(S_T+1)}")
        A(f"buffer_load_ushort {v(t+3)}, {v(t+2)}, {s(C.S_AUX,4)}, {s(S_T)} offen offset:{256*w}")
        A(f"buffer_load_ushort {v(t)}, {v(t+2)}, {s(C.S_AUX,4)}, {s(S_T)} offen offset:{256*w+32}")
        C.chain_consts(A, w)
        A(C.zero2(C.V_VB + 10)); A(C.zero2(C.V_VB + 14))
        VZ = C.V_VB + 11
        def h_init():
            A(f"v_mov_b64 {v(t+4,2)}, -1")
            A(f"v_mov_b64 {v(t+6,2)}, -1")
            A(f"v_lshl_or_b32 {v(C.V_T0)}, {v(t)}, 16, {v(t+3)}")
            for so in (C.S_PLD, C.S_PCL):
                A(f"global_store_dwordx4 {v(C.V_L16)}, {v(t+4,4)}, {s(so,2)} sc1")
                A(f"global_store_dwordx4 {v(C.V_L16)}, {v(t+4,4)}, {s(so,2)} offset:1024 sc1")
            A(C.gst1(C.V_PUB, t+4, C.S_MPUB, 0, "sc1"))
            A(f"s_xor_b32 {s(C.S_MPUB)}, {s(C.S_MPUB)}, {C.MEM_SZ}")
            A(C.gst1(C.V_PUB, C.V_T0, C.S_MPUB, 0, "sc1"))
            return 6
        def h_arrive():
            A("s_barrier")
            if w == 0:
                A(f"v_mov_b32 {v(C.V_T0)}, 0x10000")
                A("s_mov_b64 exec, 1")
                A(f"global_atomic_add {v(VZ)}, {v(C.V_T0)}, {s(S_DBG,2)} offset:{D_ARR}")
                A("s_mov_b64 exec, -1")
                return 1
            return 0
        def h_warm():
            for so in (C.S_PLD, C.S_PCL):
                A(C.gld4(t + 8, so, 0)); A(C.gld4(t + 8, so, 1024))
            A(f"s_xor_b32 {s(C.S_MLD)}, {s(C.S_MLD)}, {C.MEM_SZ}")
            A(C.gld4(t + 8, C.S_MLD, 0)); A(C.gld4(t + 8, C.S_MLD, 1024))
            A(f"s_xor_b32 {s(C.S_MLD)}, {s(C.S_MLD)}, {C.MEM_SZ}")
            A(C.gld4(t + 8, C.S_MLD, 0)); A(C.gld4(t + 8, C.S_MLD, 1024))
            return 8
        C.emit_loader(A, w, {0: h_init, 9: h_arrive, 24: h_warm})
        if diag: A("s_memrealtime s[22:23]")
        A("s_waitcnt vmcnt(0) lgkmcnt(0)")
        C.chain_consts2(A, w, cfg)
        A(f"s_xor_b32 {s(C.S_PLD)}, {s(C.S_PLD)}, {PART_SZ}")
        ds, dsv, va = C.chores(w)
        for x in ds + va: A(x)
        A(f"s_mov_b32 {s(S_T)}, {(32 << 16) + cfg['narr']}")
        spin(A, f"global_load_dword {v(C.V_T0)}, {v(VZ)}, {s(S_DBG,2)} offset:{D_ARR} sc1\n"
                f"global_load_dword {v(C.V_T1)}, {v(VZ)}, {s(S_DBG,2)} offset:{D_TK[0]} sc1",
             f"v_cmp_ne_u32 vcc, {s(S_T)}, {v(C.V_T0)}", 0)
        A(f"global_load_dword {v(C.V_T1)}, {v(VZ)}, {s(S_DBG,2)} offset:{D_TK[0]} sc1")
        if cfg["flags"]:
            spin(A, f"global_load_dword {v(C.V_T0)}, {v(VZ)}, {s(C.S_FQ,2)} sc1", f"v_cmp_eq_u32 vcc, 0, {v(C.V_T0)}", 0)
        for x in C.dma_k(w) + C.dma_v(w): A(x)
        if w == 0 and cfg["flags"]:
            A(f"s_mov_b32 m0, {C.L_FL}"); A("s_nop 0")
            A(f"global_load_lds_dword {v(C.V_L4)}, {s(C.S_FQ,2)} sc1")
        for x in C.adv(C.S_KV, 16384) + C.adv(C.S_KV2, 16384): A(x)
        A("s_waitcnt vmcnt(0) lgkmcnt(0)")
        A(f"v_readfirstlane_b32 s3, {v(C.V_T1)}")
        if diag:
            for i in range(8): A(f"s_mov_b32 {s(C.S_ACC+i)}, 0")
            if cfg.get('stamps') == 1:
                for i in range(8): A(f"s_memtime {s(C.S_TM0+2*i,2)}\ns_waitcnt lgkmcnt(0)")
            if cfg.get("stamps") == 2:
                A(f"s_lshl_b32 {s(S_T)}, {s(S_H)}, 16")
                A(f"s_add_u32 {s(S_T)}, {s(S_T)}, {WS_STAT + 0x100000 + w*16384}")
                A(f"s_add_u32 {s(C.S_ACC)}, {s(S_WS)}, {s(S_T)}")
                A(f"s_addc_u32 {s(C.S_ACC+1)}, {s(S_WS+1)}, 0")
                for i in range(16): A(f"s_mov_b32 {s(C.S_TM0+i)}, 0")
            A(f"s_memtime s[66:67]")
            A(f"s_memrealtime s[98:99]")
            A("s_waitcnt lgkmcnt(0)")
        Lslow, Ldone = A.newlabel("slow"), A.newlabel("done")
        A(f"s_cmp_lt_u32 s3, {33 if cfg.get('forceslow') else 32}")
        A(f"s_cbranch_scc1 {Lslow}")
        A(".p2align 6")
        C.emit_step_loop(A, w, cfg, "")
        A(f"s_branch {Ldone}")
        A.label(Lslow)
        C.emit_step_loop(A, w, cfg, "sc1")
        A.label(Ldone)
        A("s_waitcnt vmcnt(0)")
        A("s_barrier")
        if w == 1:
            A(f"v_mov_b32 {v(C.V_T0)}, 64")
            A("s_mov_b64 exec, 1")
            A(C.gst1(VZ, C.V_T0, C.S_FC, 0, "sc1"))
            A("s_mov_b64 exec, -1")
        if diag:
            A(f"s_memtime s[68:69]")
            A(f"s_memrealtime s[100:101]")
            A("s_waitcnt lgkmcnt(0)")
            A(f"s_sub_u32 {s(S_T)}, s68, s66")
            vals = [s(S_T), s(C.S_CNT), s(C.S_CNT+1), s(S_BUD), "s96", "s98", "s100", "s22"] + [s(C.S_ACC+i) for i in range(8)]
            for i, x in enumerate(vals): A(f"v_mov_b32 v{16+i}, {x}")
            A(f"s_lshl_b32 {s(S_T)}, {s(S_H)}, 8")
            A(f"s_add_u32 {s(S_T)}, {s(S_T)}, {WS_STAT + w*64}")
            A("v_mov_b32 v40, 0")
            for i in range(4): A(f"buffer_store_dwordx4 v[{16+4*i}:{19+4*i}], v40, {s(S_WS,4)}, {s(S_T)} offen offset:{16*i}")
        A("s_endpgm")

def build(cfg):
    A = Asm()
    K = NAME + "_kernel"
    A.label(K)
    A("s_cmp_lt_u32 s2, 256")
    A("s_cbranch_scc1 L_go")
    A("s_endpgm")
    A.label("L_go")
    A(f"s_load_dwordx4 s[80:83], s[0:1], {KA['dbg']}")
    if cfg.get("diag"): A("s_memrealtime s[96:97]")
    A("s_getreg_b32 s3, hwreg(HW_REG_XCC_ID, 0, 4)")
    if cfg.get("fakexcc"): A(cfg["fakexcc"])
    A("v_lshrrev_b32 v1, 6, v0")
    A("v_and_b32 v0, 63, v0")
    A(f"v_readfirstlane_b32 {s(S_W)}, v1")
    A("v_lshlrev_b32 v4, 2, v0")
    A("v_lshlrev_b32 v0, 4, v0")
    A("v_mov_b32 v3, 0")
    A(f"s_mov_b64 {s(S_ALIVE,2)}, -1")
    A(f"s_mov_b32 {s(S_BUD)}, {BUDGET}")
    A("s_waitcnt lgkmcnt(0)")
    srd(A, S_DBG, 80, 256); srd(A, S_WS, 82, WS_SIZE)
    A(f"s_cmp_eq_u32 {s(S_W)}, 0")
    A("s_cbranch_scc0 L_tk")
    A("s_lshl_b32 s70, s3, 2")
    A("s_cmp_lt_u32 s3, 4")
    A("s_cselect_b32 s71, 60, 112")
    A("s_add_u32 s70, s70, s71")
    A("s_cmp_eq_u32 s3, 0")
    A("s_cselect_b32 s70, 0, s70")
    A("s_cmp_lt_u32 s3, 8")
    A("s_cselect_b32 s70, s70, 252")
    A("v_mov_b32 v2, 1")
    A("v_mov_b32 v5, s70")
    A("s_lshl_b32 s71, s2, 8")
    A("s_mov_b64 exec, 1")
    A(f"global_atomic_add v2, v5, v2, {s(S_DBG,2)} sc0")
    A("s_mov_b64 exec, -1")
    A(f"buffer_store_dword v3, v4, {s(S_WS,4)}, s71 offen sc1")
    A("s_waitcnt vmcnt(1)")
    A("v_readfirstlane_b32 s72, v2")
    A("s_cmp_lt_u32 s3, 8")
    A("s_cselect_b32 s72, s72, 32")
    A("s_lshl_b32 s73, s3, 5")
    A("s_add_u32 s73, s73, s72")
    A("s_cmp_lt_u32 s72, 32")
    A("s_cbranch_scc1 L_have")
    A("s_waitcnt vmcnt(0)")
    arrive(A, 3, 2)
    A("v_mov_b32 v2, 1")
    A("s_mov_b64 exec, 1")
    A(f"global_atomic_add v2, v3, v2, {s(S_DBG,2)} offset:{D_OVF} sc0")
    A("s_mov_b64 exec, -1")
    A("s_waitcnt vmcnt(0)")
    A("v_readfirstlane_b32 s72, v2")
    A(f"s_movk_i32 {s(S_T)}, {cfg['narr']}")
    spin(A, f"global_load_ushort v2, v3, {s(S_DBG,2)} offset:{D_ARR} sc1", f"v_cmp_gt_u32 vcc, {s(S_T)}, v2")
    A(f"global_load_dword v2, v4, {s(S_DBG,2)} sc1")
    A("s_mov_b32 s73, 255")
    A("s_waitcnt vmcnt(0)")
    for x in range(8):
        Ln = A.newlabel("ov")
        A(f"v_readlane_b32 s74, v2, {D_TK[x] // 4}")
        A("s_min_u32 s74, s74, 32")
        A("s_add_u32 s72, s72, s74")
        A("s_cmp_lt_u32 s72, 32")
        A(f"s_cbranch_scc0 {Ln}")
        A(f"s_add_u32 s73, s72, {32 * x}")
        A("s_branch L_have2")
        A.label(Ln)
        A("s_sub_u32 s72, s72, 32")
    A("s_branch L_have2")
    A.label("L_have")
    A("v_mov_b32 v2, s73")
    A("ds_write_b32 v3, v2")
    A("s_waitcnt lgkmcnt(0)")
    A("s_barrier")
    A("s_waitcnt vmcnt(0)")
    arrive(A, 3, 2)
    A("s_branch L_tk2")
    A.label("L_have2")
    A("v_mov_b32 v2, s73")
    A("ds_write_b32 v3, v2")
    A("s_waitcnt lgkmcnt(0)")
    A.label("L_tk")
    A("s_barrier")
    A.label("L_tk2")
    A("ds_read_b32 v2, v3")
    A("s_waitcnt lgkmcnt(0)")
    A(f"v_readfirstlane_b32 {s(S_H)}, v2")
    A("s_barrier")
    roles = [(32, "chain"), (96, "qkv"), (32, "att"), (64, "b4"), (32, "a")]
    for n, nm in roles[:-1]:
        Ln = A.newlabel("rl")
        A(f"s_cmp_lt_u32 {s(S_H)}, {n}")
        A(f"s_cbranch_scc0 {Ln}")
        A(f"s_branch L_role_{nm}")
        A.label(Ln)
        A(f"s_sub_u32 {s(S_H)}, {s(S_H)}, {n}")
    A(f"s_and_b32 {s(S_H)}, {s(S_H)}, 31")
    en = cfg.get("roles", "chain qkv att b4 a").split()
    for nm, fn in (("a", bg.role_a), ("b4", bg.role_b4), ("att", bg.role_att), ("qkv", bg.role_qkv), ("chain", lambda A: chain_role(A, cfg))):
        A.label(f"L_role_{nm}")
        if nm in en: fn(A)
        else: A("s_endpgm")
    errs = check_hazards(A.lines)
    head = f"""; @launch grid=(256,1,1) block=(256,1,1) lds=163840
.amdgcn_target "amdgcn-amd-amdhsa--gfx950"
.text
.globl {K}
.p2align 8
.type {K},@function
"""
    tail = f""".section .rodata,"a"
.p2align 6
.amdhsa_kernel {K}
  .amdhsa_next_free_vgpr 512
  .amdhsa_next_free_sgpr 102
  .amdhsa_accum_offset 256
  .amdhsa_group_segment_fixed_size 0
  .amdhsa_kernarg_size 112
  .amdhsa_user_sgpr_count 2
  .amdhsa_user_sgpr_kernarg_segment_ptr 1
  .amdhsa_system_sgpr_workgroup_id_x 1
.end_amdhsa_kernel
"""
    return head + A.text() + tail, errs

DEF = {"d1": [1, 2, 2, 2], "e1": [[], [], [], []], "pre1": [24, 32, 40, 48], "gap1": [16, 16, 16, 20], "u1": [1, 0, 0, 2], "f1": [9, 9, 9, 9], "nb": [0, 0, 0, 0], "na": [2, 2, 2, 2], "pre2a": [12, 28, 0, 0], "pre2b": [4, 8, 14, 20], "gap2": [20, 28, 28, 28], "f2": [2, 2, 2, 2], "ba": 1, "defer": [1, 1, 0, 1], "bc": [5, 5, 5, 6], "bk": 99, "bq": 35, "nwo0": 4, "bcds": 0, "pclr": 8, "sclr": 3, "pv": 7, "skv": 4, "b1": 49, "sp": 0, "sp3": 4,
       "flags": 1, "narr": 256, "diag": 0}
if __name__ == "__main__":
    txt, errs = build(DEF)
    open(sys.argv[1] if len(sys.argv) > 1 else "k.s", "w").write(txt)
    print("hazards:", len(errs))
    for e in errs: print(e)
```

```python
import sys, json, gen
from common import NAME
cfg=dict(gen.DEF)
if len(sys.argv)>2: cfg.update(json.loads(sys.argv[2]))
txt,errs=gen.build(cfg); assert not errs, errs
ref=open("cdna_kernels/"+NAME+".s.ref").read()
hdr=ref[:ref.index("; Override launch")]
out=sys.argv[1] if len(sys.argv)>1 else "cdna_kernels/"+NAME+".s"
open(out,"w").write(hdr+txt)
print("written",out,len(hdr+txt))
```

```python
import sys
from asmlib import *
from common import *
import chain as C
import bg
from bg import srd, spin, BUD

def arrive(A, vz, vt):
    A(f"v_mov_b32 {v(vt)}, 1")
    A("s_mov_b64 exec, 1")
    A(f"global_atomic_add {v(vz)}, {v(vt)}, {s(S_DBG,2)} offset:{D_ARR}")
    A("s_mov_b64 exec, -1")

def chain_role(A, cfg):
    diag = cfg.get("diag")
    A(f"s_load_dwordx4 s[80:83], s[0:1], {KA['B_Wq']}")
    A(f"s_load_dwordx4 s[84:87], s[0:1], {KA['B_Wv']}")
    A(f"s_load_dwordx2 s[88:89], s[0:1], {KA['B_mem0']}")
    A("s_waitcnt lgkmcnt(0)")
    srd(A, C.S_WQ, 80, 4 << 20); srd(A, C.S_WK, 82, 4 << 20); srd(A, C.S_WV, 84, 4 << 20); srd(A, C.S_WO, 86, 4 << 20)
    srd(A, C.S_AUX, 88, 8192)
    labs = [A.newlabel(f"chain_w{w}") for w in range(4)]
    for w in range(1, 4):
        Ln = A.newlabel("nx")
        A(f"s_cmp_eq_u32 {s(S_W)}, {w}")
        A(f"s_cbranch_scc0 {Ln}")
        A(f"s_branch {labs[w]}")
        A.label(Ln)
    for w in range(4):
        A.label(labs[w])
        t = C.V_X
        A(f"v_bfe_u32 {v(t+2)}, {v(C.V_L16)}, 4, 4")
        A(f"v_lshlrev_b32 {v(t+2)}, 1, {v(t+2)}")
        A(f"s_and_b32 {s(S_T)}, {s(S_H)}, 3")
        A(f"s_lshl_b32 {s(S_T)}, {s(S_T)}, 11")
        A(f"s_bfe_u32 {s(S_T+1)}, {s(S_H)}, 0x10002")
        A(f"s_lshl_b32 {s(S_T+1)}, {s(S_T+1)}, 10")
        A(f"s_add_u32 {s(S_T)}, {s(S_T)}, {s(S_T+1)}")
        A(f"s_lshr_b32 {s(S_T+1)}, {s(S_H)}, 3")
        A(f"s_lshl_b32 {s(S_T+1)}, {s(S_T+1)}, 6")
        A(f"s_add_u32 {s(S_T)}, {s(S_T)}, {s(S_T+1)}")
        A(f"buffer_load_ushort {v(t+3)}, {v(t+2)}, {s(C.S_AUX,4)}, {s(S_T)} offen offset:{256*w}")
        A(f"buffer_load_ushort {v(t)}, {v(t+2)}, {s(C.S_AUX,4)}, {s(S_T)} offen offset:{256*w+32}")
        C.chain_consts(A, w)
        A(C.zero2(C.V_VB + 10)); A(C.zero2(C.V_VB + 14))
        VZ = C.V_VB + 11
        def h_init():
            A(f"v_mov_b64 {v(t+4,2)}, -1")
            A(f"v_mov_b64 {v(t+6,2)}, -1")
            A(f"v_lshl_or_b32 {v(C.V_T0)}, {v(t)}, 16, {v(t+3)}")
            for so in (C.S_PLD, C.S_PCL):
                A(f"global_store_dwordx4 {v(C.V_L16)}, {v(t+4,4)}, {s(so,2)} sc1")
                A(f"global_store_dwordx4 {v(C.V_L16)}, {v(t+4,4)}, {s(so,2)} offset:1024 sc1")
            A(C.gst1(C.V_PUB, t+4, C.S_MPUB, 0, "sc1"))
            A(f"s_xor_b32 {s(C.S_MPUB)}, {s(C.S_MPUB)}, {C.MEM_SZ}")
            A(C.gst1(C.V_PUB, C.V_T0, C.S_MPUB, 0, "sc1"))
            return 6
        def h_arrive():
            A("s_barrier")
            if w == 0:
                A(f"v_mov_b32 {v(C.V_T0)}, 0x10000")
                A("s_mov_b64 exec, 1")
                A(f"global_atomic_add {v(VZ)}, {v(C.V_T0)}, {s(S_DBG,2)} offset:{D_ARR}")
                A("s_mov_b64 exec, -1")
                return 1
            return 0
        def h_warm():
            for so in (C.S_PLD, C.S_PCL):
                A(C.gld4(t + 8, so, 0)); A(C.gld4(t + 8, so, 1024))
            A(f"s_xor_b32 {s(C.S_MLD)}, {s(C.S_MLD)}, {C.MEM_SZ}")
            A(C.gld4(t + 8, C.S_MLD, 0)); A(C.gld4(t + 8, C.S_MLD, 1024))
            A(f"s_xor_b32 {s(C.S_MLD)}, {s(C.S_MLD)}, {C.MEM_SZ}")
            A(C.gld4(t + 8, C.S_MLD, 0)); A(C.gld4(t + 8, C.S_MLD, 1024))
            return 8
        C.emit_loader(A, w, {0: h_init, 9: h_arrive, 24: h_warm})
        if diag: A("s_memrealtime s[22:23]")
        A("s_waitcnt vmcnt(0) lgkmcnt(0)")
        C.chain_consts2(A, w, cfg)
        A(f"s_xor_b32 {s(C.S_PLD)}, {s(C.S_PLD)}, {PART_SZ}")
        ds, dsv, va = C.chores(w)
        for x in ds + va: A(x)
        A(f"s_mov_b32 {s(S_T)}, {(32 << 16) + cfg['narr']}")
        spin(A, f"global_load_dword {v(C.V_T0)}, {v(VZ)}, {s(S_DBG,2)} offset:{D_ARR} sc1\n"
                f"global_load_dword {v(C.V_T1)}, {v(VZ)}, {s(S_DBG,2)} offset:{D_TK[0]} sc1",
             f"v_cmp_ne_u32 vcc, {s(S_T)}, {v(C.V_T0)}", 0)
        A(f"global_load_dword {v(C.V_T1)}, {v(VZ)}, {s(S_DBG,2)} offset:{D_TK[0]} sc1")
        if cfg["flags"]:
            spin(A, f"global_load_dword {v(C.V_T0)}, {v(VZ)}, {s(C.S_FQ,2)} sc1", f"v_cmp_eq_u32 vcc, 0, {v(C.V_T0)}", 0)
        for x in C.dma_k(w) + C.dma_v(w): A(x)
        if w == 0 and cfg["flags"]:
            A(f"s_mov_b32 m0, {C.L_FL}"); A("s_nop 0")
            A(f"global_load_lds_dword {v(C.V_L4)}, {s(C.S_FQ,2)} sc1")
        for x in C.adv(C.S_KV, 16384) + C.adv(C.S_KV2, 16384): A(x)
        A("s_waitcnt vmcnt(0) lgkmcnt(0)")
        A(f"v_readfirstlane_b32 s3, {v(C.V_T1)}")
        if diag:
            for i in range(8): A(f"s_mov_b32 {s(C.S_ACC+i)}, 0")
            if cfg.get('stamps') == 1:
                for i in range(8): A(f"s_memtime {s(C.S_TM0+2*i,2)}\ns_waitcnt lgkmcnt(0)")
            if cfg.get("stamps") == 2:
                A(f"s_lshl_b32 {s(S_T)}, {s(S_H)}, 16")
                A(f"s_add_u32 {s(S_T)}, {s(S_T)}, {WS_STAT + 0x100000 + w*16384}")
                A(f"s_add_u32 {s(C.S_ACC)}, {s(S_WS)}, {s(S_T)}")
                A(f"s_addc_u32 {s(C.S_ACC+1)}, {s(S_WS+1)}, 0")
                for i in range(16): A(f"s_mov_b32 {s(C.S_TM0+i)}, 0")
            A(f"s_memtime s[66:67]")
            A(f"s_memrealtime s[98:99]")
            A("s_waitcnt lgkmcnt(0)")
        Lslow, Ldone = A.newlabel("slow"), A.newlabel("done")
        A(f"s_cmp_lt_u32 s3, {33 if cfg.get('forceslow') else 32}")
        A(f"s_cbranch_scc1 {Lslow}")
        A(".p2align 6")
        C.emit_step_loop(A, w, cfg, "")
        A(f"s_branch {Ldone}")
        A.label(Lslow)
        C.emit_step_loop(A, w, cfg, "sc1")
        A.label(Ldone)
        A("s_waitcnt vmcnt(0)")
        A("s_barrier")
        if w == 1:
            A(f"v_mov_b32 {v(C.V_T0)}, 64")
            A("s_mov_b64 exec, 1")
            A(C.gst1(VZ, C.V_T0, C.S_FC, 0, "sc1"))
            A("s_mov_b64 exec, -1")
        if diag:
            A(f"s_memtime s[68:69]")
            A(f"s_memrealtime s[100:101]")
            A("s_waitcnt lgkmcnt(0)")
            A(f"s_sub_u32 {s(S_T)}, s68, s66")
            vals = [s(S_T), s(C.S_CNT), s(C.S_CNT+1), "s97", "s96", "s98", "s100", "s22"] + [s(C.S_ACC+i) for i in range(8)]
            for i, x in enumerate(vals): A(f"v_mov_b32 v{16+i}, {x}")
            A(f"s_lshl_b32 {s(S_T)}, {s(S_H)}, 8")
            A(f"s_add_u32 {s(S_T)}, {s(S_T)}, {WS_STAT + w*64}")
            A("v_mov_b32 v40, 0")
            for i in range(4): A(f"buffer_store_dwordx4 v[{16+4*i}:{19+4*i}], v40, {s(S_WS,4)}, {s(S_T)} offen offset:{16*i}")
            A("v_sub_u32 v41, v21, v20"); A("v_sub_u32 v42, v22, v20"); A("v_sub_u32 v43, v23, v20"); A("s_mov_b64 exec, 1")
            A(f"global_atomic_umax v40, v43, {s(S_DBG,2)} offset:4")
            A(f"global_atomic_umax v40, v41, {s(S_DBG,2)} offset:8")
            A(f"global_atomic_umax v40, v42, {s(S_DBG,2)} offset:12")
            A(f"global_atomic_umax v40, v16, {s(S_DBG,2)} offset:32")
        A("s_endpgm")

def build(cfg):
    A = Asm()
    K = NAME + "_kernel"
    A.label(K)
    A("s_cmp_lt_u32 s2, 256")
    A("s_cbranch_scc1 L_go")
    A("s_endpgm")
    A.label("L_go")
    A(f"s_load_dwordx4 s[80:83], s[0:1], {KA['dbg']}")
    if cfg.get("diag"): A("s_memrealtime s[96:97]")
    A("s_getreg_b32 s3, hwreg(HW_REG_XCC_ID, 0, 4)")
    if cfg.get("fakexcc"): A(cfg["fakexcc"])
    A("v_lshrrev_b32 v1, 6, v0")
    A("v_and_b32 v0, 63, v0")
    A(f"v_readfirstlane_b32 {s(S_W)}, v1")
    A("v_lshlrev_b32 v4, 2, v0")
    A("v_lshlrev_b32 v0, 4, v0")
    A("v_mov_b32 v3, 0")
    A(f"s_mov_b64 {s(S_ALIVE,2)}, -1")
    A(f"s_mov_b32 {s(S_BUD)}, {BUDGET}")
    A("s_waitcnt lgkmcnt(0)")
    srd(A, S_DBG, 80, 256); srd(A, S_WS, 82, WS_SIZE)
    A(f"s_cmp_eq_u32 {s(S_W)}, 0")
    A("s_cbranch_scc0 L_tk")
    A("s_lshl_b32 s70, s3, 2")
    A("s_cmp_lt_u32 s3, 4")
    A("s_cselect_b32 s71, 60, 112")
    A("s_add_u32 s70, s70, s71")
    A("s_cmp_eq_u32 s3, 0")
    A("s_cselect_b32 s70, 0, s70")
    A("s_cmp_lt_u32 s3, 8")
    A("s_cselect_b32 s70, s70, 252")
    A("v_mov_b32 v2, 1")
    A("v_mov_b32 v5, s70")
    A("s_lshl_b32 s71, s2, 8")
    A("s_mov_b64 exec, 1")
    A(f"global_atomic_add v2, v5, v2, {s(S_DBG,2)} sc0")
    A("s_mov_b64 exec, -1")
    A(f"buffer_store_dword v3, v4, {s(S_WS,4)}, s71 offen sc1")
    A("s_waitcnt vmcnt(1)")
    A("v_readfirstlane_b32 s72, v2")
    A("s_cmp_lt_u32 s3, 8")
    A("s_cselect_b32 s72, s72, 32")
    A("s_lshl_b32 s73, s3, 5")
    A("s_add_u32 s73, s73, s72")
    A("s_cmp_lt_u32 s72, 32")
    A("s_cbranch_scc1 L_have")
    A("s_waitcnt vmcnt(0)")
    arrive(A, 3, 2)
    A("v_mov_b32 v2, 1")
    A("s_mov_b64 exec, 1")
    A(f"global_atomic_add v2, v3, v2, {s(S_DBG,2)} offset:{D_OVF} sc0")
    A("s_mov_b64 exec, -1")
    A("s_waitcnt vmcnt(0)")
    A("v_readfirstlane_b32 s72, v2")
    A(f"s_movk_i32 {s(S_T)}, {cfg['narr']}")
    spin(A, f"global_load_ushort v2, v3, {s(S_DBG,2)} offset:{D_ARR} sc1", f"v_cmp_gt_u32 vcc, {s(S_T)}, v2")
    A(f"global_load_dword v2, v4, {s(S_DBG,2)} sc1")
    A("s_mov_b32 s73, 255")
    A("s_waitcnt vmcnt(0)")
    for x in range(8):
        Ln = A.newlabel("ov")
        A(f"v_readlane_b32 s74, v2, {D_TK[x] // 4}")
        A("s_min_u32 s74, s74, 32")
        A("s_add_u32 s72, s72, s74")
        A("s_cmp_lt_u32 s72, 32")
        A(f"s_cbranch_scc0 {Ln}")
        A(f"s_add_u32 s73, s72, {32 * x}")
        A("s_branch L_have2")
        A.label(Ln)
        A("s_sub_u32 s72, s72, 32")
    A("s_branch L_have2")
    A.label("L_have")
    A("v_mov_b32 v2, s73")
    A("ds_write_b32 v3, v2")
    A("s_waitcnt lgkmcnt(0)")
    A("s_barrier")
    A("s_waitcnt vmcnt(0)")
    arrive(A, 3, 2)
    A("s_branch L_tk2")
    A.label("L_have2")
    A("v_mov_b32 v2, s73")
    A("ds_write_b32 v3, v2")
    A("s_waitcnt lgkmcnt(0)")
    A.label("L_tk")
    A("s_barrier")
    A.label("L_tk2")
    A("ds_read_b32 v2, v3")
    A("s_waitcnt lgkmcnt(0)")
    A(f"v_readfirstlane_b32 {s(S_H)}, v2")
    A("s_barrier")
    if cfg.get("diag"):
        A(f"s_lshl_b32 s95, {s(S_H)}, 6"); A(f"s_lshl_b32 s94, {s(S_W)}, 4"); A("s_add_u32 s95, s95, s94")
        A("s_memrealtime s[98:99]"); A("s_waitcnt lgkmcnt(0)"); A("s_mov_b32 s100, s98"); A("s_mov_b32 s97, s98")
    roles = [(32, "chain"), (96, "qkv"), (32, "att"), (64, "b4"), (32, "a")]
    for n, nm in roles[:-1]:
        Ln = A.newlabel("rl")
        A(f"s_cmp_lt_u32 {s(S_H)}, {n}")
        A(f"s_cbranch_scc0 {Ln}")
        A(f"s_branch L_role_{nm}")
        A.label(Ln)
        A(f"s_sub_u32 {s(S_H)}, {s(S_H)}, {n}")
    A(f"s_and_b32 {s(S_H)}, {s(S_H)}, 31")
    en = cfg.get("roles", "chain qkv att b4 a").split()
    for nm, fn in (("a", bg.role_a), ("b4", bg.role_b4), ("att", bg.role_att), ("qkv", bg.role_qkv), ("chain", lambda A: chain_role(A, cfg))):
        A.label(f"L_role_{nm}")
        k0 = len(A.lines)
        if nm in en: fn(A)
        else: A("s_endpgm")
        if cfg.get("diag") and nm != "chain":
            out = []
            for ln in A.lines[k0:]:
                if ln.startswith(";mark"):
                    out += [f"s_memrealtime s[{ln.split()[1]}:{int(ln.split()[1])+1}]", "s_waitcnt lgkmcnt(0)"]
                elif ln == "s_endpgm":
                    out += ["s_waitcnt vmcnt(0)", "s_memrealtime s[54:55]", "s_waitcnt lgkmcnt(0)", "v_mov_b32 v16, s96", "v_mov_b32 v17, s54",
                            "v_mov_b32 v18, s98", "v_mov_b32 v19, s100", "v_mov_b32 v20, s95", f"v_add_u32 v20, {WS_STAT + 0x10000}, v20",
                            f"buffer_store_dwordx4 v[16:19], v20, {s(S_WS,4)}, 0 offen",
                            "v_sub_u32 v21, v17, v16", "v_mov_b32 v22, 0", "s_mov_b64 exec, 1",
                            f"global_atomic_umax v22, v21, {s(S_DBG,2)} offset:{4*(4+['qkv','att','b4','a'].index(nm))}", ln]
                else: out.append(ln)
            A.lines[k0:] = out
    errs = check_hazards(A.lines)
    head = f"""; @launch grid=(256,1,1) block=(256,1,1) lds=163840
.amdgcn_target "amdgcn-amd-amdhsa--gfx950"
.text
.globl {K}
.p2align 8
.type {K},@function
"""
    tail = f""".section .rodata,"a"
.p2align 6
.amdhsa_kernel {K}
  .amdhsa_next_free_vgpr 512
  .amdhsa_next_free_sgpr 102
  .amdhsa_accum_offset 256
  .amdhsa_group_segment_fixed_size 0
  .amdhsa_kernarg_size 112
  .amdhsa_user_sgpr_count 2
  .amdhsa_user_sgpr_kernarg_segment_ptr 1
  .amdhsa_system_sgpr_workgroup_id_x 1
.end_amdhsa_kernel
"""
    return head + A.text() + tail, errs

DEF = {"d1": [1, 2, 2, 2], "e1": [[], [], [], []], "pre1": [24, 32, 40, 48], "gap1": [16, 16, 16, 20], "u1": [1, 0, 0, 2], "f1": [9, 9, 9, 9], "nb": [0, 0, 0, 0], "na": [2, 2, 2, 2], "pre2a": [12, 28, 0, 0], "pre2b": [4, 8, 14, 20], "gap2": [20, 28, 28, 28], "f2": [2, 2, 2, 2], "ba": 1, "defer": [1, 1, 0, 1], "bc": [5, 5, 5, 6], "bk": 99, "bq": 35, "nwo0": 4, "bcds": 0, "pclr": 8, "sclr": 3, "pv": 7, "skv": 4, "b1": 49, "sp": 0, "sp3": 4,
       "flags": 1, "narr": 256, "diag": 0}
if __name__ == "__main__":
    txt, errs = build(DEF)
    open(sys.argv[1] if len(sys.argv) > 1 else "k.s", "w").write(txt)
    print("hazards:", len(errs))
    for e in errs: print(e)
```

```python
from asmlib import *
from common import *
import math, struct

def f2u(x): return struct.unpack("<I", struct.pack("<f", x))[0]
def MF(D, A, B, C=None):
    return f"v_mfma_f32_16x16x32_bf16 {r(D,4)}, {r(A,4)}, {r(B,4)}, " + ("0" if C is None else r(C,4))
def MF16(D, A, B, C=None):
    return f"v_mfma_f32_16x16x16_bf16 {r(D,4)}, {r(A,2)}, {r(B,2)}, " + ("0" if C is None else r(C,4))
def cvt(d, a, b): return f"v_cvt_pk_bf16_f32 {v(d)}, {v(a)}, {v(b)}"
def adv(reg, n): return f"s_add_u32 {s(reg)}, {s(reg)}, {n}\ns_addc_u32 {s(reg+1)}, {s(reg+1)}, 0"
def srd(A, sreg, ptr, size):
    A(f"s_mov_b32 {s(sreg)}, {s(ptr)}")
    A(f"s_and_b32 {s(sreg+1)}, {s(ptr+1)}, 0xffff")
    A(f"s_mov_b32 {s(sreg+2)}, {size:#x}")
    A(f"s_mov_b32 {s(sreg+3)}, 0x20000")
def wsptr(A, dst, off_sreg, const):
    A(f"s_add_u32 {s(off_sreg)}, {s(off_sreg)}, {const}")
    A(f"s_add_u32 {s(dst)}, {s(S_WS)}, {s(off_sreg)}")
    A(f"s_addc_u32 {s(dst+1)}, {s(S_WS+1)}, 0")
BUD = f"s_sub_u32 {s(S_BUD)}, {s(S_BUD)}, 1\ns_cselect_b64 {s(S_ALIVE,2)}, 0, {s(S_ALIVE,2)}"

def spin(A, load, cmp_fail, sleep=1):
    L, Lo = A.newlabel("spin"), A.newlabel("spino")
    A.label(L)
    A(load)
    A(BUD)
    A("s_waitcnt vmcnt(0)")
    A(cmp_fail)
    A(f"s_and_b64 vcc, vcc, {s(S_ALIVE,2)}")
    A(f"s_cbranch_scc0 {Lo}")
    if sleep: A(f"s_sleep {sleep}")
    A(f"s_branch {L}")
    A.label(Lo)

def wait_arrived(A, vt, vz):
    A(f"s_movk_i32 {s(S_T)}, 256")
    spin(A, f"global_load_ushort {v(vt)}, {v(vz)}, {s(S_DBG,2)} offset:{D_ARR} sc1", f"v_cmp_gt_u32 vcc, {s(S_T)}, {v(vt)}")

def lane_consts(A, t):
    A(f"v_lshrrev_b32 {v(t)}, 4, v0")
    A(f"v_and_b32 {v(t+1)}, 15, {v(t)}")
    A(f"v_lshrrev_b32 {v(t+2)}, 4, {v(t)}")
    A(f"v_lshrrev_b32 {v(t+3)}, 2, {v(t)}")
    A(f"v_and_b32 {v(t+4)}, 3, {v(t)}")
    A(f"v_and_b32 {v(t+5)}, 3, {v(t+3)}")

def bits(A, dst, terms, tmp, first=True):
    for (src, lo, n, mul) in terms:
        A(f"v_bfe_u32 {v(tmp)}, {v(src)}, {lo}, {n}")
        if first:
            A(f"v_mul_u32_u24 {v(dst)}, {mul}, {v(tmp)}"); first = False
        else:
            A(f"v_mul_u32_u24 {v(tmp)}, {mul}, {v(tmp)}")
            A(f"v_add_u32 {v(dst)}, {v(dst)}, {v(tmp)}")

S_RING = 60
def loader(A, seq, depth=8, pre=0):
    n_ = len(seq)
    def issue(n):
        e = seq[n]
        for i in range(4):
            A(f"s_add_u32 m0, {s(S_RING)}, {(n % depth) * 4096 + i * 1024}")
            A(f"s_mov_b32 {s(S_T)}, {e['so'](i)}")
            A(f"buffer_load_dwordx4 {v(e['vd'])}, {s(e['srd'],4)}, {s(S_T)} offen lds")
    for n in range(min(depth, n_)): issue(n)
    for n in range(n_):
        later = min(n_ - 1, n + depth - 1) - n
        A(f"s_waitcnt vmcnt({4 * later})")
        e = seq[n]
        for x in range(2):
            for part in range(2):
                for u in range(2):
                    A(f"ds_read_b64_tr_b16 {r(e['dst'] + 8*x + 4*part + 2*u, 2)}, {v(e['vt'])} offset:{(n % depth) * 4096 + e['off'](x, part, u)}")
        if n + depth < n_:
            A("s_waitcnt lgkmcnt(0)")
            issue(n + depth)
    A("s_waitcnt lgkmcnt(0)")

def coop_loader(A, seq, hooks=None, park=None, nt=""):
    hooks = hooks or {}
    n_ = len(seq); cnt = [0]; last = {}
    def issue(n):
        e = seq[n]
        for i in range(4):
            A(f"s_add_u32 m0, {s(S_RING)}, {(n % 8) * 4096 + i * 1024}")
            A(f"s_mov_b32 {s(S_T)}, {e['so'](i)}")
            A(f"buffer_load_dwordx4 {v(e['vd'])}, {s(e['srd'],4)}, {s(S_T)} offen {nt} lds")
        cnt[0] += 4; last[n] = cnt[0]
    def writeback(n):
        for p in range(4):
            A(f"ds_write_b128 {v(park[1])}, {v(park[0] + 16*(n&1) + 4*p, 4)} offset:{(n % 8) * 4096 + p*1024}")
    for n in range(min(7, n_)): issue(n)
    for n in range(n_):
        A(f"s_waitcnt vmcnt({min(63, cnt[0] - last[n])}) lgkmcnt(0)")
        A("s_barrier")
        if n in hooks: cnt[0] += hooks[n]()
        if n + 7 < n_: issue(n + 7)
        if n and seq[n-1]["dst"] is None: writeback(n - 1)
        e = seq[n]
        dst = e["dst"] if e["dst"] is not None else park[0] + 16*(n&1)
        for x in range(2):
            for part in range(2):
                for u in range(2):
                    ad, off = e["rd"](x, part, u)
                    A(f"ds_read_b64_tr_b16 {r(dst + 8*x + 4*part + 2*u, 2)}, {v(ad)} offset:{(n % 8) * 4096 + off}")
    A("s_waitcnt lgkmcnt(0)")
    A("s_barrier")
    if seq[-1]["dst"] is None: writeback(n_ - 1)

XRS = 1056
XBUF = 32 * XRS
P_XR, P_KS, P_Z, P_T = 1, 2, 3, 4
P_XF = 16
P_ACC = 32
P_E = 80
P_W = 128
S_SX = 8; S_S1, S_S2, S_S3 = 12, 16, 20
S_XO, S_XL, S_XD, S_N, S_CNTU = 34, 35, 36, 37, 38
S_P0, S_P1, S_P2, S_FL, S_P3 = 40, 42, 44, 46, 52
def wf(mat, ks, t): return P_W + 16 * (8 * mat + (ks >> 1)) + 8 * t + 4 * (ks & 1)
def acc(mat, rt, t): return P_ACC + 16 * mat + 8 * rt + 4 * t

def proj_setup(A, srds, rowstride, col_sreg, colbase):
    t = P_ACC
    lane_consts(A, t)
    vD, vT = P_T, P_XF
    A(f"s_lshl_b32 {s(S_T)}, {s(S_W)}, 4")
    A(f"v_add_u32 {v(t+6)}, {s(S_T)}, {v(t+2)}")
    A(f"s_mov_b32 {s(S_T)}, {rowstride}")
    A(f"v_mul_lo_u32 {v(vD)}, {s(S_T)}, {v(t+6)}")
    A(f"v_xor_b32 {v(t+6)}, {v(t+5)}, {v(t+2)}")
    A(f"v_lshl_add_u32 {v(vD)}, {v(t+6)}, 6, {v(vD)}")
    A(f"v_lshl_add_u32 {v(vD)}, {v(t+4)}, 4, {v(vD)}")
    A(f"v_add_u32 {v(vD)}, {s(col_sreg)}, {v(vD)}")
    A(f"s_lshl_b32 {s(S_RING)}, {s(S_W)}, 15")
    A(f"v_xor_b32 {v(t+7)}, {s(S_W)}, {v(t+5)}")
    bits(A, vT, [(t+2, 1, 1, 32768), (t+2, 0, 1, 2048), (t+5, 0, 2, 256), (t+7, 0, 2, 64), (t+4, 0, 2, 8)], t+6)
    A(f"v_add_u32 {v(vT+1)}, 65536, {v(vT)}")
    bits(A, P_XR, [(t+1, 0, 4, XRS), (t+2, 0, 2, 16)], t+6)
    bits(A, P_KS, [(t+1, 2, 1, 4096), (t+2, 0, 2, 256), (t+1, 3, 1, 64), (t+1, 0, 2, 16)], t+6)
    A(f"v_mov_b32 {v(P_Z)}, 0")
    seq = []
    for m in (1, 2, 0):
        for kk in range(8):
            seq.append(dict(srd=srds[m], vd=vD, so=(lambda i, kk=kk, m=m: (64*kk + 4*i) * rowstride + colbase[m]),
                            rd=(lambda x, part, u: (vT + part, 1024*u + 32*x)), dst=P_W + 16 * (8*m + kk)))
    coop_loader(A, seq)

def x_dma(A):
    for i in range(8):
        A(f"s_add_u32 m0, {s(S_XL)}, {i * XRS}")
        A(f"s_add_u32 {s(S_T)}, {s(S_XO)}, {i * 1024}")
        A(f"buffer_load_dwordx4 v0, {s(S_SX,4)}, {s(S_T)} offen lds")

def proj_loop(A, xstep, nst, epilogue, midhook):
    A(f"s_mul_i32 {s(S_XL)}, {s(S_W)}, {8 * XRS}")
    A(f"s_mov_b32 {s(S_XD)}, {XBUF}")
    A(f"s_mov_b32 {s(S_CNTU)}, 0")
    x_dma(A)
    A("s_waitcnt vmcnt(0)")
    L = A.newlabel("proj")
    A.label(L)
    A(f"s_waitcnt vmcnt({nst})")
    A("s_barrier")
    rd = lambda ks: [f"ds_read_b128 {v(P_XF + 8*(ks&1) + 4*rt, 4)}, {v(P_XR)} offset:{rt*16*XRS + ks*64}" for rt in range(2)]
    A("\n".join(rd(0)))
    A(f"s_add_u32 {s(S_XO)}, {s(S_XO)}, {xstep}")
    A(f"s_add_u32 {s(S_XL)}, {s(S_XL)}, {s(S_XD)}")
    x_dma(A)
    for ks in range(16):
        if ks < 15:
            A("\n".join(rd(ks + 1))); A("s_waitcnt lgkmcnt(2)")
        else:
            A("s_waitcnt lgkmcnt(0)")
        for m in (1, 2, 0):
            for rt in range(2):
                for t in range(2):
                    xf = P_XF + 8*(ks&1) + 4*rt
                    a_, b_ = (xf, wf(m, ks, t)) if m == 2 else (wf(m, ks, t), xf)
                    A(MF(acc(m, rt, t), a_, b_, acc(m, rt, t) if ks else None))
        if ks == 5 and midhook: midhook()
    A(f"v_add_u32 {v(P_XR)}, {s(S_XD)}, {v(P_XR)}")
    A(f"s_sub_u32 {s(S_XD)}, 0, {s(S_XD)}")
    epilogue()
    A(f"s_add_u32 {s(S_CNTU)}, {s(S_CNTU)}, 1")
    A(f"s_cmp_lt_u32 {s(S_CNTU)}, {s(S_N)}")
    A(f"s_cbranch_scc1 {L}")

def post_flag(A, sval):
    Ls = A.newlabel("nofl")
    A(f"s_cmp_eq_u32 {s(S_W)}, 0")
    A(f"s_cbranch_scc0 {Ls}")
    A(f"v_mov_b32 {v(P_T)}, {sval}")
    A("s_mov_b64 exec, 1")
    A(f"global_store_dword {v(P_Z)}, {v(P_T)}, {s(S_FL,2)} sc1")
    A("s_mov_b64 exec, -1")
    A.label(Ls)

def role_qkv(A):
    A(f"s_load_dwordx4 s[80:83], s[0:1], {KA['B_Wq']}")
    A(f"s_load_dwordx2 s[84:85], s[0:1], {KA['B_Wv']}")
    A(f"s_load_dwordx2 s[86:87], s[0:1], {KA['B_x']}")
    A(f"s_mul_i32 s70, {s(S_H)}, 43691")
    A("s_lshr_b32 s70, s70, 17")
    A("s_mul_i32 s71, s70, 3")
    A(f"s_sub_u32 s71, {s(S_H)}, s71")
    A("s_waitcnt lgkmcnt(0)")
    srd(A, S_S1, 80, 4 << 20); srd(A, S_S2, 82, 4 << 20); srd(A, S_S3, 84, 4 << 20); srd(A, S_SX, 86, 2 << 20)
    A("s_lshl_b32 s72, s70, 8")
    proj_setup(A, [S_S1, S_S2, S_S3], 8192, 72, [0, 0, 0])
    A(";mark 100")
    wait_arrived(A, P_T, P_Z)
    A("s_cmp_eq_u32 s71, 0")
    A(f"s_cselect_b32 {s(S_N)}, 22, 21")
    A(f"s_lshl_b32 {s(S_XO)}, s71, 15")
    A(f"s_lshl_b32 s73, {s(S_W)}, 13")
    A(f"s_add_u32 {s(S_XO)}, {s(S_XO)}, s73")
    A("s_lshl_b32 s72, s70, 6")
    A("s_add_u32 s72, s72, s71")
    A(f"s_lshl_b32 s74, {s(S_W)}, 10")
    A("s_lshl_b32 s73, s72, 13"); A("s_add_u32 s73, s73, s74"); wsptr(A, S_P0, 73, WS_Q + 2048)
    A("s_lshl_b32 s73, s72, 14"); A("s_add_u32 s73, s73, s74"); wsptr(A, S_P1, 73, WS_KV)
    A("s_lshl_b32 s73, s72, 14"); A("s_add_u32 s73, s73, s74"); A("s_add_u32 s73, s73, s74"); wsptr(A, S_P2, 73, WS_KV + 8192)
    A("s_add_u32 s73, s72, s70"); A("s_lshl_b32 s73, s73, 12"); A("s_add_u32 s73, s73, s74"); wsptr(A, S_P3, 73, WS_KM + 4096)
    A(f"v_mov_b64 {v(P_E+24,2)}, -1"); A(f"v_mov_b64 {v(P_E+26,2)}, -1")
    A("s_lshl_b32 s73, s70, 7"); A("s_lshl_b32 s74, s71, 2"); A("s_add_u32 s73, s73, s74"); wsptr(A, S_FL, 73, F_Q)
    def epi():
        for m, base in ((1, P_E), (2, P_E + 8), (0, P_E + 16)):
            for x in range(2):
                for j in range(4):
                    if m == 2: a0 = acc(2, j >> 1, x) + 2 * (j & 1); A(cvt(base + 4*x + j, a0, a0 + 1))
                    else: A(cvt(base + 4*x + j, acc(m, x, 0) + j, acc(m, x, 1) + j))
            for x in range(2):
                if m == 1: A(f"global_store_dwordx4 {v(P_KS)}, {v(base + 4*x, 4)}, {s(S_P1,2)} offset:{128*x} sc1")
                if m == 2: A(f"global_store_dwordx4 v0, {v(base + 4*x, 4)}, {s(S_P2,2)} offset:{1024*x} sc1")
                if m == 0: A(f"global_store_dwordx4 v0, {v(base + 4*x, 4)}, {s(S_P0,2)} offset:{4096*x - 2048} sc1")
        A(f"global_store_dwordx4 v0, {v(P_E+24, 4)}, {s(S_P3,2)} sc1")
        A(adv(S_P0, 3 * 8192)); A(adv(S_P1, 3 * 16384)); A(adv(S_P2, 3 * 16384)); A(adv(S_P3, 3 * 4096))
    def mid():
        A("s_waitcnt vmcnt(8)")
        A("s_barrier")
        post_flag(A, s(S_CNTU))
    proj_loop(A, 3 * 32768, 7, epi, mid)
    A("s_waitcnt vmcnt(0)")
    A("s_barrier")
    post_flag(A, 1000)
    A("s_endpgm")

def xmax(A, op, x, y):
    A(f"v_mov_b32 {v(y)}, {v(x)}"); A("s_nop 1")
    A(f"v_permlane32_swap_b32 {v(x)}, {v(y)}")
    A(f"{op} {v(x)}, {v(x)}, {v(y)}")
    A(f"v_mov_b32 {v(y)}, {v(x)}"); A("s_nop 1")
    A(f"v_permlane16_swap_b32 {v(x)}, {v(y)}")
    A(f"{op} {v(x)}, {v(x)}, {v(y)}")

def role_att(A):
    vKS, vZ, vKM, vL4, vOS, vT = 1, 2, 3, 4, 5, 6
    ONE = 12
    Q, K, Vf, KMf, VM, T, P, O, SU = 16, 32, 64, 96, 112, 128, 140, 148, 180
    sQ, sK, sV, sV2, sKM, sO, sFQ, sFC, sFO = 8, 10, 12, 14, 16, 18, 20, 22, 24
    sS, sSet, sCnt, sMask, sC, sNeg = 34, 35, 36, 70, 38, 40
    t = 200
    lane_consts(A, t)
    bits(A, vKS, [(t+1, 2, 1, 4096), (t+2, 0, 2, 256), (t+1, 3, 1, 64), (t+1, 0, 2, 16)], t+6)
    bits(A, vKM, [(t+2, 0, 2, 256), (t+1, 2, 1, 128), (t+1, 3, 1, 64), (t+1, 0, 2, 16)], t+6)
    vIDX = 11
    A(f"v_mov_b32 {v(t+6)}, 0x4444"); A(f"v_mov_b32 {v(t+7)}, 0xeeee")
    A("s_mov_b32 vcc_lo, 0xcccccccc"); A("s_mov_b32 vcc_hi, 0xcccccccc")
    A(f"v_cndmask_b32 {v(vIDX)}, {v(t+6)}, {v(t+7)}, vcc")
    bits(A, vOS, [(t+1, 3, 1, 65536), (t+2, 0, 2, 256), (t+1, 0, 3, 16)], t+6)
    A(f"v_lshlrev_b32 {v(vL4)}, 2, {v(t)}")
    A(f"v_mov_b32 {v(vZ)}, 0")
    for i in range(4): A(f"v_mov_b32 {v(ONE+i)}, 0x3f803f80")
    for i in range(8): A(f"v_mov_b32 {v(VM + 2*i + 1)}, 0")
    A(f"v_mov_b32 {v(P+5)}, 0")
    A(f"s_and_b32 s90, {s(S_H)}, 15"); A("s_lshl_b32 s90, s90, 1"); A(f"s_lshr_b32 s91, {s(S_W)}, 1"); A("s_add_u32 s90, s90, s91")
    A(f"s_and_b32 s91, {s(S_W)}, 1")
    A(f"s_lshr_b32 {s(sS)}, {s(S_H)}, 4")
    A(f"s_mov_b32 {s(sSet)}, {s(sS)}"); A(f"s_mov_b32 {s(sCnt)}, 0")
    A("s_lshl_b32 s92, s91, 4")
    A(f"v_add_u32 {v(t+6)}, s92, {v(t+1)}")
    A(f"v_lshlrev_b32 {v(t+7)}, 2, {v(t+2)}")
    A(f"v_sub_u32 {v(t+6)}, {v(t+6)}, {v(t+7)}")
    for i in range(8): A(f"v_cmp_le_i32 {s(sMask + 2*i, 2)}, {16*(i>>2) + (i&3)}, {v(t+6)}")
    c = (128 ** -0.5) * math.log2(math.e)
    A(f"s_mov_b32 {s(sC)}, {f2u(c):#x}"); A(f"s_mov_b32 {s(sC+1)}, {f2u(-c):#x}")
    A(f"v_mov_b32 {v(vT+4)}, {f2u(-1e9 * math.sqrt(128)):#x}")
    A("s_lshl_b32 s92, s90, 6"); A(f"s_add_u32 s92, s92, {s(sS)}")
    A("s_lshl_b32 s93, s92, 13"); A("s_lshl_b32 s94, s91, 12"); A("s_add_u32 s93, s93, s94"); wsptr(A, sQ, 93, WS_Q)
    A("s_lshl_b32 s93, s92, 14"); wsptr(A, sK, 93, WS_KV)
    A("s_lshl_b32 s93, s92, 14"); wsptr(A, sV, 93, WS_KV + 8192 + 4096)
    A("s_add_u32 s93, s92, s90"); A("s_lshl_b32 s93, s93, 12"); wsptr(A, sKM, 93, WS_KM + 4096)
    A(f"s_lshl_b32 s93, {s(sS)}, 18"); A("s_lshl_b32 s94, s91, 17"); A("s_add_u32 s93, s93, s94")
    A("s_lshl_b32 s94, s90, 11"); A("s_add_u32 s93, s93, s94"); wsptr(A, sO, 93, WS_O)
    A("s_lshl_b32 s93, s90, 7"); wsptr(A, sFQ, 93, F_Q)
    A(f"s_lshl_b32 s93, {s(sS)}, 8"); A("s_lshl_b32 s94, s91, 7"); A("s_add_u32 s93, s93, s94")
    A("s_lshl_b32 s94, s90, 2"); A("s_add_u32 s93, s93, s94"); wsptr(A, sFO, 93, F_O)
    wait_arrived(A, vT, vZ)
    L = A.newlabel("att")
    A.label(L)
    A(f"s_lshl_b32 {s(S_T)}, {s(sSet)}, 2")
    A(f"v_mov_b32 {v(vT+1)}, {s(S_T)}")
    spin(A, f"global_load_dword {v(vT)}, {v(vT+1)}, {s(sFQ,2)} sc1", f"v_cmp_ge_u32 vcc, {s(sCnt)}, {v(vT)}", 4)
    for ks in range(4): A(f"global_load_dwordx4 {v(Q + 4*ks, 4)}, v0, {s(sQ,2)} offset:{1024*ks} sc1")
    for kt in range(2):
        for ks in range(4): A(f"global_load_dwordx4 {v(K + 16*kt + 4*ks, 4)}, {v(vKS)}, {s(sK,2)} offset:{1024*ks + 128*kt} sc1")
    for et in range(8): A(f"global_load_dwordx4 {v(Vf + 4*et, 4)}, v0, {s(sV,2)} offset:{1024*et - 4096} sc1")
    A("s_waitcnt vmcnt(8)")
    for kt in range(2):
        for ks in range(4): A(MF(T + 4*kt, K + 16*kt + 4*ks, Q + 4*ks, T + 4*kt if ks else None))
    A(f"v_mov_b64 {v(T+8,2)}, 0"); A(f"v_mov_b64 {v(T+10,2)}, 0")
    A("s_nop 3")
    for i in range(8): A(f"v_cndmask_b32 {v(T+i)}, {v(vT+4)}, {v(T+i)}, {s(sMask + 2*i, 2)}")
    mx = vT + 2
    A(f"v_max3_f32 {v(mx)}, {v(T)}, {v(T+1)}, {v(T+2)}")
    A(f"v_max3_f32 {v(mx)}, {v(mx)}, {v(T+3)}, {v(T+4)}")
    A(f"v_max3_f32 {v(mx)}, {v(mx)}, {v(T+5)}, {v(T+6)}")
    A(f"v_max_f32 {v(mx)}, {v(mx)}, {v(T+7)}")
    lds_ = [f"global_load_dwordx4 {v(KMf + 4*kk, 4)}, {v(vKM)}, {s(sKM,2)} offset:{1024*kk} sc1" for kk in range(2)] + \
           [f"global_load_dword {v(VM + 2*et)}, {v(vL4)}, {s(sKM,2)} offset:{2048 + 256*et} sc1" for et in range(8)]
    al = [KMf + i for i in range(8)] + [VM + 2*i for i in range(8)]
    ck = [f"v_maximum3_f32 {v(vT)}, {v(al[0])}, {v(al[1])}, {v(al[2])}"] + \
         [f"v_maximum3_f32 {v(vT)}, {v(vT)}, {v(al[i])}, {v(al[i+1])}" for i in range(3, 15, 2)] + [f"v_cmp_u_f32 vcc, {v(vT)}, {v(al[15])}"]
    spin(A, "\n".join(lds_), "\n".join(ck), 1)
    for kk in range(2):
        A(f"v_smfmac_f32_16x16x64_bf16 {v(T+8,4)}, {v(KMf + 4*kk, 4)}, {v(Q + 8*kk, 8)}, {v(vIDX)}")
    A("s_nop 7")
    A(f"v_pk_add_f32 {v(T+8,2)}, {v(T+8,2)}, {v(T+10,2)}")
    A(f"v_max3_f32 {v(mx)}, {v(mx)}, {v(T+8)}, {v(T+9)}")
    xmax(A, "v_max_f32", mx, mx + 1)
    A(f"v_mul_f32 {v(mx)}, {s(sC+1)}, {v(mx)}")
    for i in range(10): A(f"v_fma_f32 {v(T+i)}, {v(T+i)}, {s(sC)}, {v(mx)}")
    for i in range(10): A(f"v_exp_f32 {v(T+i)}, {v(T+i)}")
    for i in range(5): A(cvt(P + i, T + 2*i, T + 2*i + 1))
    A("s_waitcnt vmcnt(0)")
    A("s_nop 0")
    A(MF(SU, ONE, P))
    for et in range(8): A(MF(O + 4*et, Vf + 4*et, P))
    A(MF16(SU, ONE, P + 4, SU))
    for et in range(8): A(MF16(O + 4*et, VM + 2*et, P + 4, O + 4*et))
    A(f"v_rcp_f32 {v(SU)}, {v(SU)}")
    A("s_nop 0")
    for ks in range(4):
        if ks == 3: A("s_nop 1")
        for j in range(4):
            a0 = O + 8*ks + 2*j
            A(f"v_mul_f32 {v(a0)}, {v(a0)}, {v(SU)}"); A(f"v_mul_f32 {v(a0+1)}, {v(a0+1)}, {v(SU)}")
            A(cvt(K + 4*ks + j, a0, a0 + 1))
        A(f"global_store_dwordx4 {v(vOS)}, {v(K + 4*ks, 4)}, {s(sO,2)} offset:{1024*(ks>>1) + 128*(ks&1)} sc1")
    A(f"v_mov_b32 {v(vT)}, 1")
    A("s_waitcnt vmcnt(0)")
    A("s_mov_b64 exec, 1")
    A(f"global_store_dword {v(vZ)}, {v(vT)}, {s(sFO,2)} sc1")
    A("s_mov_b64 exec, -1")
    A(adv(sQ, 2*8192)); A(adv(sK, 2*16384)); A(adv(sV, 2*16384)); A(adv(sKM, 2*4096)); A(adv(sO, 2 << 18)); A(adv(sFO, 512))
    A(f"s_add_u32 {s(sSet)}, {s(sSet)}, 2")
    A(f"s_cmp_ge_u32 {s(sSet)}, 3")
    A(f"s_cselect_b32 {s(S_T)}, 3, 0")
    A(f"s_addc_u32 {s(sCnt)}, {s(sCnt)}, 0")
    A(f"s_sub_u32 {s(sSet)}, {s(sSet)}, {s(S_T)}")
    A(f"s_add_u32 {s(sS)}, {s(sS)}, 2")
    A(f"s_cmp_lt_u32 {s(sS)}, 64")
    A(f"s_cbranch_scc1 {L}")
    A("s_endpgm")

def role_b4(A):
    vIDX, vZ, vF, vLW, vLR, vOUT, vT = 1, 2, 3, 4, 5, 6, 8
    AC, OF, RD = 16, 32, 96
    W = 256
    sWo, sO, sO2, sFO, sOut, sS, sD = 8, 12, 14, 16, 18, 34, 35
    RS, PS = 36, 8 * 36
    BUFB = 8 * PS * 4
    A(f"s_load_dwordx2 s[80:81], s[0:1], {KA['B_Wo']}")
    A(f"s_load_dwordx2 s[82:83], s[0:1], {KA['out']}")
    t = 32
    lane_consts(A, t)
    A(f"s_lshr_b32 s90, {s(S_H)}, 4"); A(f"s_and_b32 s91, {s(S_H)}, 15")
    vD, vTr = vT, vT + 1
    bits(A, vD, [(t+3, 0, 4, 1024), (t+4, 0, 2, 16)], t+6)
    A(f"s_lshl_b32 s92, {s(S_W)}, 20"); A("s_lshl_b32 s93, s91, 6"); A("s_add_u32 s92, s92, s93")
    A(f"v_add_u32 {v(vD)}, s92, {v(vD)}")
    A(f"s_lshl_b32 {s(S_RING)}, {s(S_W)}, 15")
    bits(A, vTr, [(t+5, 1, 1, 32*64), (t+2, 0, 1, 16*64), (t+2, 1, 1, 4*64), (t+5, 0, 1, 64), (t+4, 0, 2, 8)], t+6)
    A(f"v_add_u32 {v(vTr)}, {s(S_RING)}, {v(vTr)}")
    A(f"v_mov_b32 {v(t+6)}, 0x4444"); A(f"v_mov_b32 {v(t+7)}, 0xeeee")
    A(f"v_cmp_lt_u32 vcc, 7, {v(t+1)}"); A("s_nop 1")
    A(f"v_cndmask_b32 {v(vIDX)}, {v(t+6)}, {v(t+7)}, vcc")
    A(f"v_mov_b32 {v(vZ)}, 0")
    bits(A, vF, [(t, 0, 3, 4)], t+6)
    bits(A, vLW, [(t+2, 1, 1, PS*4), (t+2, 0, 1, 4*RS*4), (t+1, 0, 4, 4)], t+6)
    A(f"s_mul_i32 s92, {s(S_W)}, {2*PS*4}"); A(f"v_add_u32 {v(vLW)}, s92, {v(vLW)}")
    bits(A, vLR, [(t+2, 0, 2, RS*4), (t+1, 0, 4, 8)], t+6)
    A(f"s_and_b32 s92, {s(S_W)}, 1"); A(f"s_mul_i32 s93, s92, {4*RS*4}"); A(f"v_add_u32 {v(vLR)}, s93, {v(vLR)}")
    bits(A, vOUT, [(t+2, 0, 2, 2048), (t+1, 0, 4, 4)], t+6)
    A("s_waitcnt lgkmcnt(0)")
    srd(A, sWo, 80, 4 << 20)
    A("s_lshl_b32 s93, s90, 14"); A("s_lshl_b32 s92, s92, 13"); A("s_add_u32 s93, s93, s92")
    A("s_lshl_b32 s92, s91, 6"); A("s_add_u32 s93, s93, s92"); A("s_add_u32 s93, s93, 1024")
    A(f"s_add_u32 {s(sOut)}, s82, s93"); A(f"s_addc_u32 {s(sOut+1)}, s83, 0")
    A("s_lshl_b32 s93, s90, 16"); A(f"s_lshl_b32 s92, {s(S_W)}, 14"); A("s_add_u32 s93, s93, s92"); wsptr(A, sO, 93, WS_O + 4096)
    A(f"s_add_u32 {s(sO2)}, {s(sO)}, 8192"); A(f"s_addc_u32 {s(sO2+1)}, {s(sO+1)}, 0")
    A("s_lshr_b32 s93, s90, 1"); A("s_lshl_b32 s93, s93, 7"); A(f"s_lshl_b32 s92, {s(S_W)}, 5"); A("s_add_u32 s93, s93, s92"); wsptr(A, sFO, 93, F_O)
    seq = [dict(srd=sWo, vd=vD, so=(lambda i, n=n: (64*n + 16*i) * 1024), vt=vTr,
                off=(lambda x, part, u: (8*part + 2*u) * 64 + x * 32), dst=W + 16*n) for n in range(16)]
    loader(A, seq)
    A(";mark 100")
    wait_arrived(A, vT, vZ)
    A("s_barrier")
    A(f"s_mov_b32 {s(sS)}, 0"); A(f"s_mov_b32 {s(sD)}, {BUFB}")
    L = A.newlabel("b4")
    A.label(L)
    for i in range(4): A(f"v_mov_b64 {v(AC + 2*i, 2)}, 0")
    spin(A, f"global_load_dword {v(vT)}, {v(vF)}, {s(sFO,2)} sc1", f"v_cmp_eq_u32 vcc, 0, {v(vT)}", 1)
    for n in range(16):
        A(f"global_load_dwordx4 {v(OF + 4*n, 4)}, v0, {s(sO if n < 8 else sO2, 2)} offset:{1024*(n&7) - 4096} sc1")
    for n in range(16):
        A(f"s_waitcnt vmcnt({15 - n})")
        for x in range(2):
            A(f"v_smfmac_f32_16x16x64_bf16 {v(AC + 4*x, 4)}, {v(OF + 4*n, 4)}, {r(W + 16*n + 8*x, 8)}, {v(vIDX)}")
    A(adv(sO, 1 << 18)); A(adv(sO2, 1 << 18)); A(adv(sFO, 256))
    A("s_nop 1")
    for j in range(4): A(f"ds_write2_b32 {v(vLW)}, {v(AC + j)}, {v(AC + 4 + j)} offset0:{j*RS} offset1:{j*RS + 16}")
    A("s_waitcnt lgkmcnt(0)")
    A("s_barrier")
    Ls = A.newlabel("b4s")
    A(f"s_cmp_ge_u32 {s(S_W)}, 2")
    A(f"s_cbranch_scc1 {Ls}")
    for p in range(8): A(f"ds_read_b64 {v(RD + 2*p, 2)}, {v(vLR)} offset:{p*PS*4}")
    for p in range(1, 8):
        A(f"s_waitcnt lgkmcnt({7 - p})")
        A(f"v_pk_add_f32 {v(RD,2)}, {v(RD,2)}, {v(RD + 2*p, 2)}")
    A(cvt(RD, RD, RD + 1))
    A(f"global_store_dword {v(vOUT)}, {v(RD)}, {s(sOut,2)}")
    A.label(Ls)
    A(adv(sOut, 32 * 2048))
    A(f"v_add_u32 {v(vLW)}, {s(sD)}, {v(vLW)}"); A(f"v_add_u32 {v(vLR)}, {s(sD)}, {v(vLR)}")
    A(f"s_sub_u32 {s(sD)}, 0, {s(sD)}")
    A(f"s_add_u32 {s(sS)}, {s(sS)}, 1")
    A(f"s_cmp_lt_u32 {s(sS)}, 64")
    A(f"s_cbranch_scc1 {L}")
    A("s_endpgm")

def role_a(A):
    WPH, IDN, ONE = 6, 10, 12
    KV = 96
    E = 80
    sWo, sOut, sL2e = 12, 24, 52
    A(f"s_load_dwordx8 s[80:87], s[0:1], {KA['A_x']}")
    A(f"s_load_dwordx2 s[88:89], s[0:1], {KA['out']}")
    A(f"s_lshr_b32 s70, {s(S_H)}, 2"); A(f"s_and_b32 s71, {s(S_H)}, 3")
    A("s_lshl_b32 s74, s71, 2"); A(f"s_add_u32 s74, s74, {s(S_W)}")
    A("s_waitcnt lgkmcnt(0)")
    srd(A, S_SX, 80, 2 << 20); srd(A, S_S2, 82, 512 * 3072); srd(A, S_S3, 84, 16384); srd(A, sWo, 86, 512 * 1024)
    t = P_ACC
    lane_consts(A, t)
    bits(A, E, [(t+2, 0, 2, 128), (t+1, 0, 4, 2)], t+6)
    A("s_lshl_b32 s72, s74, 10")
    for hd in range(2):
        for jj in range(4):
            A(f"buffer_load_ushort {v(E + 2 + 4*hd + jj)}, {v(E)}, {s(S_S3,4)}, s72 offen offset:{512*hd + 32*jj}")
    A(f"v_lshlrev_b32 {v(t+6)}, 2, {v(t+2)}")
    A(f"v_sub_u32 {v(t+6)}, {v(t+1)}, {v(t+6)}")
    A(f"v_mov_b32 {v(t+7)}, 0x3f80"); A(f"v_mov_b32 {v(t+8)}, 0x3f800000")
    for d in range(2):
        A(f"v_cmp_eq_u32 vcc, {2*d}, {v(t+6)}"); A("s_nop 1")
        A(f"v_cndmask_b32 {v(IDN+d)}, 0, {v(t+7)}, vcc")
        A(f"v_cmp_eq_u32 vcc, {2*d+1}, {v(t+6)}"); A("s_nop 1")
        A(f"v_cndmask_b32 {v(IDN+d)}, {v(IDN+d)}, {v(t+8)}, vcc")
    for i in range(4): A(f"v_mov_b32 {v(ONE+i)}, 0x3f803f80")
    for i in range(16): A(f"v_mov_b64 {v(KV + 2*i, 2)}, 0")
    A("s_waitcnt vmcnt(0)")
    for i in range(4): A(f"v_lshl_or_b32 {v(WPH+i)}, {v(E + 3 + 2*i)}, 16, {v(E + 2 + 2*i)}")
    A("s_lshl_b32 s72, s71, 8")
    proj_setup(A, [S_S2, S_S2, S_S2], 3072, 72, [0, 1024, 2048])
    wait_arrived(A, P_T, P_Z)
    A(f"s_mov_b32 {s(S_N)}, 8")
    A(f"s_lshl_b32 {s(S_XO)}, s70, 18"); A(f"s_lshl_b32 s73, {s(S_W)}, 13"); A(f"s_add_u32 {s(S_XO)}, {s(S_XO)}, s73")
    A(f"s_lshl_b32 s73, {s(S_H)}, 17"); A(f"s_lshl_b32 s72, {s(S_W)}, 15"); A("s_add_u32 s73, s73, s72"); wsptr(A, S_P0, 73, WS_APHI)
    l2e = math.log2(math.e)
    A(f"s_mov_b32 {s(sL2e)}, {f2u(l2e):#x}"); A(f"s_mov_b32 {s(sL2e+1)}, {f2u(-l2e):#x}")
    def softmax2(x, out):
        p, n_, mx, mn, y = E, E + 4, E + 8, E + 9, E + 10
        A(f"v_max3_f32 {v(mx)}, {v(x)}, {v(x+1)}, {v(x+2)}"); A(f"v_min3_f32 {v(mn)}, {v(x)}, {v(x+1)}, {v(x+2)}")
        A(f"v_max_f32 {v(mx)}, {v(mx)}, {v(x+3)}"); A(f"v_min_f32 {v(mn)}, {v(mn)}, {v(x+3)}")
        def both(o1, o2):
            for pl in ("v_permlane32_swap_b32", "v_permlane16_swap_b32"):
                A(f"v_mov_b64 {v(y,2)}, {v(mx,2)}"); A("s_nop 1")
                A(f"{pl} {v(mx)}, {v(y)}"); A(f"{pl} {v(mn)}, {v(y+1)}")
                A(f"{o1} {v(mx)}, {v(mx)}, {v(y)}"); A(f"{o2} {v(mn)}, {v(mn)}, {v(y+1)}")
        both("v_max_f32", "v_min_f32")
        A(f"v_mul_f32 {v(mx)}, {s(sL2e+1)}, {v(mx)}"); A(f"v_mul_f32 {v(mn)}, {s(sL2e)}, {v(mn)}")
        for i in range(4):
            A(f"v_fma_f32 {v(p+i)}, {v(x+i)}, {s(sL2e)}, {v(mx)}"); A(f"v_fma_f32 {v(n_+i)}, {v(x+i)}, {s(sL2e+1)}, {v(mn)}")
        for i in range(8): A(f"v_exp_f32 {v(p+i)}, {v(p+i)}")
        A(f"v_add_f32 {v(mx)}, {v(p)}, {v(p+1)}"); A(f"v_add_f32 {v(mn)}, {v(n_)}, {v(n_+1)}")
        for i in (2, 3):
            A(f"v_add_f32 {v(mx)}, {v(mx)}, {v(p+i)}"); A(f"v_add_f32 {v(mn)}, {v(mn)}, {v(n_+i)}")
        both("v_add_f32", "v_add_f32")
        A(f"v_rcp_f32 {v(mx)}, {v(mx)}"); A(f"v_rcp_f32 {v(mn)}, {v(mn)}")
        for i in range(4): A(f"v_mul_f32 {v(p+i)}, {v(p+i)}, {v(mx)}")
        for i in range(4): A(f"v_mul_f32 {v(n_+i)}, {v(n_+i)}, {v(mn)}")
        for i in range(4): A(cvt(out + i, p + 2*i, p + 2*i + 1))
    def epi():
        X = P_XF
        for m in (1, 0):
            for rt in range(2):
                for hd in range(2):
                    a0 = acc(m, rt, hd); xr = X + 8*(1 - m) + 4*rt + 2*hd
                    A(cvt(xr, a0, a0 + 1)); A(cvt(xr + 1, a0 + 2, a0 + 3))
        A("s_nop 0")
        for m in (1, 0):
            for rt in range(2):
                for hd in range(2):
                    A(MF16(acc(m, rt, hd), WPH + 2*hd, X + 8*(1 - m) + 4*rt + 2*hd))
        for rt in range(2):
            for hd in range(2): softmax2(acc(1, rt, hd), acc(1, rt, hd))
        for hd in range(2):
            for jx in range(4):
                a0 = acc(2, jx >> 1, hd) + 2 * (jx & 1); A(cvt(X + 4*hd + jx, a0, a0 + 1))
        for hd in range(2):
            A("s_nop 0")
            for sg in range(2):
                for rt in range(2): A(MF16(acc(2, sg, rt), acc(1, rt, hd) + 2*sg, IDN))
            softmax2(acc(0, 0, hd), acc(0, 0, hd))
            for sg in range(2):
                for jx in range(4):
                    a0 = acc(2, sg, jx >> 1) + 2 * (jx & 1); A(cvt(X + 8 + 4*sg + jx, a0, a0 + 1))
            A("s_nop 1")
            for sg in range(2):
                A(MF(KV + 16*hd + 4*sg, X + 8 + 4*sg, X + 4*hd, KV + 16*hd + 4*sg))
                A(MF(KV + 16*hd + 8 + 4*sg, X + 8 + 4*sg, ONE, KV + 16*hd + 8 + 4*sg))
            softmax2(acc(0, 1, hd), acc(0, 1, hd))
        for rt in range(2):
            for hd in range(2):
                A(f"global_store_dwordx4 v0, {v(acc(0, rt, hd), 4)}, {s(S_P0,2)} offset:{2048*rt + 1024*hd} sc1")
        A(adv(S_P0, 4096))
    proj_loop(A, 32768, 4, epi, None)
    A(";mark 100")
    A("s_lshl_b32 s73, s74, 16"); A("s_lshl_b32 s72, s70, 13"); A("s_add_u32 s73, s73, s72"); wsptr(A, S_P1, 73, WS_AKV + 4096)
    for i in range(8): A(f"global_store_dwordx4 v0, {v(KV + 4*i, 4)}, {s(S_P1,2)} offset:{1024*i - 4096} sc1")
    A("s_lshl_b32 s73, s71, 7"); A("s_lshl_b32 s72, s70, 2"); A("s_add_u32 s73, s73, s72"); wsptr(A, S_FL, 73, F_A1)
    A("s_waitcnt vmcnt(0)")
    A("s_barrier")
    post_flag(A, 1)
    lane_consts(A, t)
    vD, vT, vF, vOUT = E, E + 1, E + 2, E + 3
    bits(A, vD, [(t+3, 0, 4, 1024), (t+4, 0, 2, 16)], t+6)
    A("s_lshl_b32 s72, s74, 6"); A(f"v_add_u32 {v(vD)}, s72, {v(vD)}")
    bits(A, vT, [(t+2, 0, 2, 256), (t+5, 0, 2, 64), (t+4, 0, 2, 16)], t+6)
    A(f"v_add_u32 {v(vT)}, {s(S_RING)}, {v(vT)}")
    bits(A, vF, [(t, 0, 3, 4)], t+6)
    bits(A, vOUT, [(t+1, 0, 4, 2048), (t+2, 0, 2, 16)], t+6)
    WO = 256
    seq = [dict(srd=sWo, vd=vD, so=(lambda i, n=n: (64*n + 16*i) * 1024), vt=vT,
                off=(lambda x, part, u: (32*part + 16*u) * 64 + x * 8), dst=WO + 16*n) for n in range(8)]
    loader(A, seq)
    A("s_lshl_b32 s73, s71, 7"); wsptr(A, S_FL, 73, F_A1)
    spin(A, f"global_load_dword {v(P_T)}, {v(vF)}, {s(S_FL,2)} sc1", f"v_cmp_eq_u32 vcc, 0, {v(P_T)}", 4)
    A("s_lshl_b32 s73, s74, 16"); wsptr(A, S_P1, 73, WS_AKV + 4096)
    B0 = 128
    for half in range(2):
        for g_ in range(4):
            dst = KV if (half == 0 and g_ == 0) else B0 + 32*g_
            for i in range(8): A(f"global_load_dwordx4 {v(dst + 4*i, 4)}, v0, {s(S_P1,2)} offset:{1024*i - 4096} sc1")
            A(adv(S_P1, 8192))
        A("s_waitcnt vmcnt(0)")
        for g_ in range(4):
            if half == 0 and g_ == 0: continue
            for i in range(16): A(f"v_pk_add_f32 {v(KV + 2*i, 2)}, {v(KV + 2*i, 2)}, {v(B0 + 32*g_ + 2*i, 2)}")
    KB = 16
    for hd in range(2):
        for z in range(2):
            for jx in range(4):
                a0 = KV + 16*hd + 8*z + 2*jx; A(cvt(KB + 8*hd + 4*z + jx, a0, a0 + 1))
    A(f"s_lshl_b32 s73, {s(S_H)}, 17"); A(f"s_lshl_b32 s72, {s(S_W)}, 15"); A("s_add_u32 s73, s73, s72"); wsptr(A, S_P0, 73, WS_APHI + 4096)
    for i in range(32):
        A(f"global_load_dwordx4 {v(B0 + 4*i, 4)}, v0, {s(S_P0,2)} offset:{1024*(i&7) - 4096} sc1")
        if i & 7 == 7: A(adv(S_P0, 8192))
    A("s_lshl_b32 s73, s70, 18"); A("s_lshl_b32 s72, s74, 10"); A("s_add_u32 s73, s73, s72"); wsptr(A, S_P1, 73, WS_AO)
    A(f"s_mov_b32 {s(sL2e)}, {f2u(1e-6):#x}")
    A("s_waitcnt vmcnt(0)")
    N = 32
    for tl in range(16):
        nb = N + 20 * (tl & 1)
        for hd in range(2):
            A(MF(nb + 8 + 4*hd, KB + 8*hd + 4, B0 + 8*tl + 4*hd))
        for hd in range(2):
            A(MF(nb + 4*hd, KB + 8*hd, B0 + 8*tl + 4*hd))
        for hd in range(2): A(f"v_add_f32 {v(nb + 8 + 4*hd)}, {s(sL2e)}, {v(nb + 8 + 4*hd)}")
        for hd in range(2): A(f"v_rcp_f32 {v(nb + 8 + 4*hd)}, {v(nb + 8 + 4*hd)}")
        for hd in range(2):
            for i in range(4): A(f"v_mul_f32 {v(nb + 4*hd + i)}, {v(nb + 4*hd + i)}, {v(nb + 8 + 4*hd)}")
        for jx in range(4): A(cvt(nb + 16 + jx, nb + 2*jx, nb + 2*jx + 1))
        A(f"global_store_dwordx4 v0, {v(nb + 16, 4)}, {s(S_P1,2)} sc1")
        A(adv(S_P1, 16384))
    A("s_lshl_b32 s73, s70, 7"); A("s_lshl_b32 s72, s71, 2"); A("s_add_u32 s73, s73, s72"); wsptr(A, S_FL, 73, F_A2)
    A("s_waitcnt vmcnt(0)")
    A("s_barrier")
    post_flag(A, 1)
    A("s_lshl_b32 s73, s70, 7"); wsptr(A, S_FL, 73, F_A2)
    A(f"v_and_b32 {v(vF)}, 12, {v(vF)}")
    spin(A, f"global_load_dword {v(P_T)}, {v(vF)}, {s(S_FL,2)} sc1", f"v_cmp_eq_u32 vcc, 0, {v(P_T)}", 4)
    A("s_lshl_b32 s73, s70, 18"); wsptr(A, S_P0, 73, WS_AO + 4096)
    A("s_lshl_b32 s73, s70, 19"); A("s_lshl_b32 s72, s74, 6"); A("s_add_u32 s73, s73, s72")
    A(f"s_add_u32 {s(sOut)}, s88, s73"); A(f"s_addc_u32 {s(sOut+1)}, s89, 0")
    def ld(buf):
        for i in range(16):
            A(f"global_load_dwordx4 {v(B0 + 64*buf + 4*i, 4)}, v0, {s(S_P0,2)} offset:{1024*(i&7) - 4096} sc1")
            if i & 7 == 7: A(adv(S_P0, 8192))
    ld(0)
    A(f"s_mov_b32 {s(S_CNTU)}, 0")
    L = A.newlabel("awo")
    A.label(L)
    for buf in range(2):
        ld(1 - buf)
        A("s_waitcnt vmcnt(16)")
        for ks in range(16):
            for x in range(2):
                A(MF(N + 4*x, WO + 16*(ks >> 1) + 8*x + 4*(ks & 1), B0 + 64*buf + 4*ks, N + 4*x if ks else None))
        A("s_nop 7")
        for jx in range(4): A(cvt(N + 8 + jx, N + 2*jx, N + 2*jx + 1))
        A(f"global_store_dwordx4 {v(vOUT)}, {v(N + 8, 4)}, {s(sOut,2)}")
        A(adv(sOut, 16 * 2048))
    A(f"s_add_u32 {s(S_CNTU)}, {s(S_CNTU)}, 1")
    A(f"s_cmp_lt_u32 {s(S_CNTU)}, 8")
    A(f"s_cbranch_scc1 {L}")
    A("s_endpgm")
```

```python
from asmlib import *
from common import *
import bg
import math

L_KX, L_VX, L_MS, L_QO, L_KM, L_FL, L_WL = 0, 8192, 16384, 24576, 28928, 31104, 31360
QO_RS = 136
MEM_SZ = 65536
MEM_CP = 8192 + 2048
NCOPY = 2
V_L16, V_IDX, V_PST, V_PUB, V_QW, V_KW, V_QR, V_KR, V_WL, V_L4, V_T0, V_T1 = range(12)
V_SEL = 12
V_M, V_X, V_VB, V_A, V_VA, V_H = 16, 48, 80, 96, 112, 120
V_W = 128
S_WQ, S_WK, S_WV, S_WO = 8, 12, 16, 20
S_AUX = 24
S_STEP = 34
S_PST = 8
S_PLD = 36
S_PCL = 38
S_MLD = 40
S_MPUB = 42
S_KV = 44
S_KV2 = 46
S_KMO = 12
S_FQ = 14
S_FC = 16
S_FM = 18
S_HLD = 20
S_HPUB = 24
S_HM = 26
S_HF = 52
S_ONE = 54
S_ONEZ = 56
S_C = 58
S_NC = 61
S_CNT = 70
S_TM0 = 72
S_ACC = 88

def wslot(n): return V_W + 16 * n

def SM(acc, A, B, hi=False):
    return f"v_smfmac_f32_16x16x64_bf16 {r(acc,4)}, {r(A,4)}, {r(B,8)}, {v(V_IDX)}" + (" abid:1" if hi else "")
def MF(D, A, B, C=None):
    return f"v_mfma_f32_16x16x32_bf16 {r(D,4)}, {r(A,4)}, {r(B,4)}, " + ("0" if C is None else r(C,4))
def ldsrd(dst, addr, off): return f"ds_read_b128 {r(dst,4)}, {v(addr)} offset:{off}"
def zero2(reg): return f"v_mov_b64 {v(reg,2)}, 0"

def slot_plan(w):
    f = 0
    res = []
    for kk in range(8):
        if kk != f: res.append(("q", kk))
        if kk != f: res.append(("k", kk))
    for kk in range(8): res.append(("v", kk))
    res += [("o", 1, 0), ("o", 1, 1)]
    assert len(res) == 24
    reg = {k: wslot(i) for i, k in enumerate(res)}
    ldsl = [("q", f), ("k", f), ("o", 0, 0), ("o", 0, 1), ("o", 2, 0), ("o", 2, 1), ("o", 3, 0), ("o", 3, 1)]
    if w:
        for m in "qk": reg[(m, 0)] = reg.pop((m, 2*w))
    return reg, res, ldsl

def park_first(A, w):
    reg, res, ldsl = slot_plan(w)
    for mi, m in enumerate("qk"):
        srcr = reg[(m, 0)] if w else V_X + 16*mi
        for p in range(4): A(f"ds_write_b128 {v(V_WL)}, {r(srcr + 4*p, 4)} offset:{mi*4096 + p*1024}")
    A("s_waitcnt lgkmcnt(0)")
    if w:
        for mi, m in enumerate("qk"):
            for i in range(16):
                d = reg[(m, 0)] + i
                A(f"v_accvgpr_write_b32 {r(d)}, {v(V_X + 16*mi + i)}" if d >= 256 else f"v_mov_b32 {v(d)}, {v(V_X + 16*mi + i)}")

def emit_loader(A, hooks, nt=""):
    vDq, vDo, vTq, vTo = V_H, V_H + 1, V_H + 2, V_H + 4
    reg, res, ldsl = slot_plan(0)
    t = V_A
    bg.lane_consts(A, t)
    A(f"s_lshl_b32 {s(S_T)}, {s(S_W)}, 4")
    A(f"v_lshl_add_u32 {v(t+6)}, {v(t+2)}, 1, {s(S_T)}")
    A(f"v_xor_b32 {v(t+7)}, {v(t+5)}, {v(t+2)}")
    A(f"v_lshlrev_b32 {v(t+7)}, 6, {v(t+7)}")
    A(f"v_lshl_add_u32 {v(t+7)}, {v(t+4)}, 4, {v(t+7)}")
    A(f"v_lshl_add_u32 {v(vDq)}, {v(t+6)}, 13, {v(t+7)}")
    A(f"v_lshl_add_u32 {v(vDo)}, {v(t+6)}, 10, {v(t+7)}")
    A(f"s_lshl_b32 {s(S_T)}, {s(S_H)}, 8")
    A(f"v_add_u32 {v(vDq)}, {s(S_T)}, {v(vDq)}")
    A(f"s_lshl_b32 {s(S_T)}, {s(S_H)}, 17")
    A(f"v_add_u32 {v(vDo)}, {s(S_T)}, {v(vDo)}")
    A(f"s_lshl_b32 {s(bg.S_RING)}, {s(S_W)}, 15")
    A(f"s_add_u32 {s(bg.S_RING)}, {s(bg.S_RING)}, {L_WL}")
    bg.bits(A, t+8, [(t+2, 0, 1, 1), (t+5, 1, 1, 2)], t+6)
    A(f"v_xor_b32 {v(t+7)}, {s(S_W)}, {v(t+8)}")
    bg.bits(A, vTq, [(t+5, 0, 1, 32768), (t+2, 1, 1, 2048), (t+8, 0, 2, 256), (t+7, 0, 2, 64), (t+4, 0, 2, 8)], t+6)
    A(f"v_add_u32 {v(vTq)}, {L_WL}, {v(vTq)}")
    A(f"v_add_u32 {v(vTq+1)}, 65536, {v(vTq)}")
    A(f"v_xor_b32 {v(t+7)}, {s(S_W)}, {v(t+2)}")
    bg.bits(A, vTo, [(t+5, 0, 1, 32768), (t+2, 0, 2, 256), (t+7, 0, 2, 64), (t+5, 1, 1, 32), (t+4, 0, 2, 8)], t+6)
    A(f"v_add_u32 {v(vTo)}, {L_WL}, {v(vTo)}")
    A(f"v_add_u32 {v(vTo+1)}, 65536, {v(vTo)}")
    seq = []
    order = sorted(res, key=lambda k: {"k": 0, "v": 1, "o": 2, "q": 3}[k[0]])
    for key, dst in [(k, reg[k]) for k in order] + [(("q", 0), V_X), (("k", 0), V_X + 16)] + [(k, None) for k in ldsl[2:]]:
        if key[0] == "o":
            seq.append(dict(srd=S_WO, vd=vDo, so=(lambda i, key=key: (64*key[2] + (i&1) + 8*(i>>1)) * 1024 + key[1] * 256),
                            rd=(lambda x, part, u: (vTo + x, 1024*u + 2048*part)), dst=dst))
        else:
            seq.append(dict(srd={"q": S_WQ, "k": S_WK, "v": S_WV}[key[0]], vd=vDq,
                            so=(lambda i, key=key: (64*key[1] + (i&1) + 8*(i>>1)) * 8192),
                            rd=(lambda x, part, u: (vTq + part, 1024*u + 32*x)), dst=dst))
    bg.coop_loader(A, seq, hooks, (V_M, V_WL), nt)

def chain_consts(A, w):
    t = V_A
    A(f"v_lshrrev_b32 {v(t)}, 4, {v(V_L16)}")
    A(f"v_and_b32 {v(t+1)}, 15, {v(t)}")
    A(f"v_lshrrev_b32 {v(t+2)}, 4, {v(t)}")
    A(f"v_lshlrev_b32 {v(V_L4)}, 2, {v(t)}")
    A(f"v_add_u32 {v(V_WL)}, {L_WL + w*32768}, {v(V_L16)}")
    A(f"s_mov_b32 {s(S_HF)}, 0xcccccccc")
    A(f"s_mov_b32 {s(S_HF+1)}, 0xcccccccc")
    A(f"v_mov_b32 {v(t+3)}, 0xe4844444")
    A(f"v_mov_b32 {v(t+4)}, 0xee9eeeee")
    A(f"v_cndmask_b32 {v(t+5)}, {v(t+3)}, {v(t+4)}, {s(S_HF,2)}")
    A(f"v_mov_b32 {v(t+3)}, 0x84e44444")
    A(f"v_mov_b32 {v(t+4)}, 0x9eeeeeee")
    A(f"v_cndmask_b32 {v(t+6)}, {v(t+3)}, {v(t+4)}, {s(S_HF,2)}")
    A(f"v_cmp_lt_u32 vcc, 31, {v(t)}")
    A("s_nop 1")
    A(f"v_cndmask_b32 {v(V_IDX)}, {v(t+5)}, {v(t+6)}, vcc")
    A(f"s_lshl_b32 {s(S_T)}, {s(S_H)}, 6")
    A(f"s_add_u32 {s(S_T)}, {s(S_T)}, {8*w*PART_JS}")
    A(f"v_mul_u32_u24 {v(V_PST)}, {PART_JS}, {v(t+2)}")
    A(f"v_lshl_add_u32 {v(V_PST)}, {v(t+1)}, 2, {v(V_PST)}")
    A(f"v_add_u32 {v(V_PST)}, {s(S_T)}, {v(V_PST)}")
    A(f"v_and_b32 {v(t+3)}, {NCOPY-1}, {v(t+2)}")
    A(f"v_mul_u32_u24 {v(V_PUB)}, {MEM_CP}, {v(t+3)}")
    A(f"v_lshrrev_b32 {v(t+3)}, 3, {v(t+1)}")
    A(f"v_lshl_add_u32 {v(V_PUB)}, {v(t+3)}, 8, {v(V_PUB)}")
    A(f"v_bfe_u32 {v(t+3)}, {v(t+1)}, 2, 1")
    A(f"v_lshl_add_u32 {v(V_PUB)}, {v(t+3)}, 5, {v(V_PUB)}")
    A(f"v_and_b32 {v(t+3)}, 3, {v(t+1)}")
    A(f"v_lshl_add_u32 {v(V_PUB)}, {v(t+3)}, 2, {v(V_PUB)}")
    A(f"s_add_u32 {s(S_T+2)}, {s(S_WS)}, {WS_XCH + 0x1fffff}")
    A(f"s_addc_u32 {s(S_T+3)}, {s(S_WS+1)}, 0")
    A(f"s_and_b32 {s(S_T+2)}, {s(S_T+2)}, 0xffe00000")
    A(f"s_mul_i32 {s(S_PLD)}, {s(S_H)}, {PART_JS}")
    A(f"s_add_u32 {s(S_PLD)}, {s(S_PLD)}, {w*2048}")
    A(f"s_add_u32 {s(S_PLD)}, {s(S_PLD)}, {s(S_T+2)}")
    A(f"s_xor_b32 {s(S_PCL)}, {s(S_PLD)}, {PART_SZ}")
    A(f"s_add_u32 {s(S_MLD)}, {s(S_T+2)}, {0x100000 + w*2048}")
    A(f"s_lshr_b32 {s(S_T)}, {s(S_H)}, 3")
    A(f"s_lshl_b32 {s(S_T)}, {s(S_T)}, 9")
    A(f"s_and_b32 {s(S_T+1)}, {s(S_H)}, 3")
    A(f"s_lshl_b32 {s(S_T+1)}, {s(S_T+1)}, 6")
    A(f"s_add_u32 {s(S_T)}, {s(S_T)}, {s(S_T+1)}")
    A(f"s_and_b32 {s(S_T+1)}, {s(S_H)}, 4")
    A(f"s_lshl_b32 {s(S_T+1)}, {s(S_T+1)}, 2")
    A(f"s_add_u32 {s(S_T)}, {s(S_T)}, {s(S_T+1)}")
    A(f"s_add_u32 {s(S_MPUB)}, {s(S_MLD)}, {s(S_T)}")
    A(f"s_xor_b32 {s(S_MPUB)}, {s(S_MPUB)}, {MEM_SZ}")
    A(f"s_and_b32 {s(S_T)}, {s(S_H)}, {NCOPY-1}")
    A(f"s_mul_i32 {s(S_T)}, {s(S_T)}, {MEM_CP}")
    A(f"s_add_u32 {s(S_MLD)}, {s(S_MLD)}, {s(S_T)}")
    for x in (S_PLD, S_PCL, S_MLD, S_MPUB): A(f"s_mov_b32 {s(x+1)}, {s(S_T+3)}")
    A(f"v_mul_u32_u24 {v(V_QW)}, {2*QO_RS*4}, {v(t+2)}")
    A(f"v_lshl_add_u32 {v(V_QW)}, {v(t+1)}, 2, {v(V_QW)}")
    A(f"v_add_u32 {v(V_QW)}, {L_QO + 64*w}, {v(V_QW)}")
    A(f"v_lshrrev_b32 {v(t+3)}, 2, {v(t+1)}")
    A(f"v_and_b32 {v(t+4)}, 1, {v(t+1)}")
    A(f"v_lshl_add_u32 {v(t+5)}, {v(t+3)}, 1, {v(t+4)}")
    A(f"v_mul_u32_u24 {v(V_QR)}, {QO_RS*4}, {v(t+5)}")
    A(f"v_lshl_add_u32 {v(V_QR)}, {v(t+2)}, 4, {v(V_QR)}")
    A(f"v_add_u32 {v(V_QR)}, {L_QO}, {v(V_QR)}")
    A(f"v_mul_u32_u24 {v(V_KR)}, 272, {v(t+2)}")
    A(f"v_lshl_add_u32 {v(V_KR)}, {v(t+1)}, 4, {v(V_KR)}")
    A(f"v_add_u32 {v(V_KR)}, {L_KM}, {v(V_KR)}")
    A(f"v_lshrrev_b32 {v(t+5)}, 3, {v(t+1)}")
    A(f"v_mul_u32_u24 {v(V_KW)}, 272, {v(t+5)}")
    A(f"v_and_b32 {v(t+5)}, 1, {v(t+2)}")
    A(f"v_lshl_add_u32 {v(V_KW)}, {v(t+5)}, 7, {v(V_KW)}")
    A(f"v_lshrrev_b32 {v(t+5)}, 1, {v(t+2)}")
    A(f"v_lshl_add_u32 {v(V_KW)}, {v(t+5)}, 6, {v(V_KW)}")
    A(f"v_lshl_add_u32 {v(V_KW)}, {v(t+4)}, 5, {v(V_KW)}")
    A(f"v_bfe_u32 {v(t+5)}, {v(t+1)}, 1, 2")
    A(f"v_lshl_add_u32 {v(V_KW)}, {v(t+5)}, 2, {v(V_KW)}")
    A(f"v_add_u32 {v(V_KW)}, {L_KM + (w>>1)*1088 + 2*(w&1)*272}, {v(V_KW)}")
    A(f"v_lshlrev_b32 {v(t+6)}, 4, {v(t+4)}")
    A(f"v_mov_b32 {v(t+7)}, 0x3f80")
    for d in range(4):
        A(f"v_lshlrev_b32 {v(V_SEL+d)}, {v(t+6)}, {v(t+7)}")
    A(f"s_mov_b32 {s(S_ONE)}, 0x3f803f80")
    A(f"s_mov_b32 {s(S_ONE+1)}, 0x3f803f80")
    A(f"s_mov_b32 {s(S_ONEZ)}, 0x3f803f80")
    A(f"s_mov_b32 {s(S_ONEZ+1)}, 0")
    import struct
    c = (128 ** -0.5) * math.log2(math.e)
    cb = struct.unpack("<I", struct.pack("<f", c))[0]
    A(f"s_mov_b32 {s(S_C)}, {cb:#x}")
    A(f"s_mov_b32 {s(S_C+1)}, {cb:#x}")
    A(f"s_mov_b32 {s(S_NC)}, {cb | 0x80000000:#x}")
    A(f"s_mov_b32 {s(S_CNT)}, 0")
    A(f"s_mov_b32 {s(S_CNT+1)}, 0")
    A(f"s_mov_b32 {s(S_STEP)}, 0")
    A(f"s_lshl_b32 {s(S_T)}, {s(S_H)}, 20")
    A(f"s_add_u32 {s(S_T)}, {s(S_T)}, {WS_KV + w*2048}")
    A(f"s_add_u32 {s(S_KV)}, {s(S_WS)}, {s(S_T)}")
    A(f"s_addc_u32 {s(S_KV+1)}, {s(S_WS+1)}, 0")
    A(f"s_add_u32 {s(S_KV2)}, {s(S_KV)}, 8192")
    A(f"s_addc_u32 {s(S_KV2+1)}, {s(S_KV+1)}, 0")

def chain_consts2(A, w, cfg):
    A(f"s_and_b32 {s(S_T+2)}, {s(S_MPUB)}, 0xffe00000")
    for tt in range(2):
        A(f"s_add_u32 {s(S_PST+2*tt)}, {s(S_T+2)}, {4*tt*PART_JS + 4096}")
        A(f"s_mov_b32 {s(S_PST+2*tt+1)}, {s(S_MPUB+1)}")
    A(f"s_lshl_b32 {s(S_T)}, {s(S_H)}, 7")
    A(f"s_add_u32 {s(S_FQ)}, {s(S_WS)}, {s(S_T)}")
    A(f"s_addc_u32 {s(S_FQ+1)}, {s(S_WS+1)}, 0")
    A(f"s_add_u32 {s(S_FC)}, {s(S_FQ)}, {F_C - F_Q}")
    A(f"s_addc_u32 {s(S_FC+1)}, {s(S_FQ+1)}, 0")
    A(f"s_mov_b64 {s(S_FM,2)}, 7")
    A(f"s_add_u32 {s(S_HLD)}, {s(S_WS)}, {F_H}")
    A(f"s_addc_u32 {s(S_HLD+1)}, {s(S_WS+1)}, 0")
    A(f"s_lshl_b32 {s(S_T)}, {s(S_H)}, 2")
    A(f"s_add_u32 {s(S_HPUB)}, {s(S_HLD)}, {s(S_T)}")
    A(f"s_addc_u32 {s(S_HPUB+1)}, {s(S_HLD+1)}, 0")
    A(f"s_mov_b32 {s(S_HM)}, -1")
    A(f"s_mov_b32 {s(S_HM+1)}, 0")
    A(f"s_mul_i32 {s(S_T)}, {s(S_H)}, {KM_HS}")
    A(f"s_add_u32 {s(S_T)}, {s(S_T)}, {WS_KM}")
    A(f"s_add_u32 {s(S_KMO)}, {s(S_WS)}, {s(S_T)}")
    A(f"s_addc_u32 {s(S_KMO+1)}, {s(S_WS+1)}, 0")

def adv(reg, n): return [f"s_add_u32 {s(reg)}, {s(reg)}, {n}", f"s_addc_u32 {s(reg+1)}, {s(reg+1)}, 0"]
def gld4(dst, base, off): return f"global_load_dwordx4 {v(dst,4)}, {v(V_L16)}, {s(base,2)} offset:{off} sc1"
def gst1(addr, dat, base, off, mod): return f"global_store_dword {v(addr)}, {v(dat)}, {s(base,2)} offset:{off} {mod}"
def dma_k(w):
    return [f"s_mov_b32 m0, {L_KX + w*2048}", "s_nop 0",
            f"global_load_lds_dwordx4 {v(V_L16)}, {s(S_KV,2)} sc1",
            f"global_load_lds_dwordx4 {v(V_L16)}, {s(S_KV,2)} offset:1024 sc1"]
def dma_v(w):
    return [f"s_mov_b32 m0, {L_VX + w*2048}", "s_nop 0",
            f"global_load_lds_dwordx4 {v(V_L16)}, {s(S_KV2,2)} sc1",
            f"global_load_lds_dwordx4 {v(V_L16)}, {s(S_KV2,2)} offset:1024 sc1"]

def nops(A, n):
    while n > 0:
        k = min(n, 16); A(f"s_nop {k-1}"); n -= k

def stream(A, mfmas, fill):
    for i, m in enumerate(mfmas):
        A(m)
        for x in fill.get(i, []): A(x)
    assert all(k < len(mfmas) for k in fill)

def chores(w):
    ds = [ldsrd(V_X + 4*n, V_WL, n * 1024) for n in range(8)]
    dsv = []
    for t in range(2):
        dsv.append(f"ds_read_b64 {v(V_VB + 8*t, 2)}, {v(V_L16)} offset:{L_VX + w*2048 + t*1024}")
        dsv.append(f"ds_read_b64 {v(V_VB + 8*t + 4, 2)}, {v(V_L16)} offset:{L_VX + w*2048 + t*1024 + 8}")
    va = [zero2(V_A + 2*i) for i in range(8)] + [zero2(V_VA + 2*i) for i in range(4)] + \
         [zero2(V_VB + 6), zero2(V_VB + 14)]
    return ds, dsv, va

def spread(A, work, gap):
    rest = []
    for x in work:
        n = x.count("\n") + 1
        if not x.startswith("ds_") and n <= gap and not any(not y.startswith("ds_") for y in rest):
            A(x); gap -= n
        else: rest.append(x)
    nops(A, gap)
    return rest

def pub_ops(w, t0):
    rd = f"ds_read2_b32 {v(t0,2)}, {v(V_T0)} offset0:0 offset1:68"
    pre = f"v_add_u32 {v(V_T0)}, {L_KM + 2*w*272}, {v(V_L4)}"
    st = [gst1(V_L4, V_VB + 8*t + 2, S_KMO, 2048 + (2*w+t)*256, 'sc1') for t in range(2)] + \
         [gst1(V_L4, t0 + b, S_KMO, (2*w+b)*256, 'sc1') for b in range(2)]
    return pre, rd, st

def emit_step_loop(A, w, cfg, st):
    reg, res, ldsl = slot_plan(w)
    f0, f1 = 2*w, 2*w + 1
    oth = [(f1 + 1 + i) % 8 for i in range(6)]
    Mc = lambda k: V_M + 4*k
    q0, q1, k0, k1 = V_A, V_A + 4, V_A + 8, V_A + 12
    va0, va1 = V_VA, V_VA + 4
    def Bq(k, t): return (V_X if k == f0 else reg[("q", k)]) + 8*t
    def Bk(k, t): return (V_X + 16 if k == f0 else reg[("k", k)]) + 8*t
    def Bv(k, t): return reg[("v", k)] + 8*t
    budget = [f"s_sub_u32 {s(S_BUD)}, {s(S_BUD)}, 1", f"s_cselect_b64 {s(S_ALIVE,2)}, 0, {s(S_ALIVE,2)}"]
    Lloop, Lexit = (A.newlabel(x) for x in ("step", "exit"))
    D1 = cfg["d1"][w]
    diag = cfg.get("diag")
    tr = 1 if cfg.get("stamps") == 2 else 0
    def stamp(i):
        if cfg.get("stamps") and not cfg.get("fine"): A(f"s_memtime {s(S_TM0+2*i,2)}")
    def add(fill, pos, *ins): fill.setdefault(pos, []).extend(ins)

    A.label(Lloop)
    _start = len(A.lines)
    ds, dsv, va = chores(w)
    h2ld = [gld4(Mc(f0), S_MLD, 0), gld4(Mc(f1), S_MLD, 1024)]
    wk = [f"s_xor_b32 {s(S_PLD)}, {s(S_PLD)}, {PART_SZ}", f"s_xor_b32 {s(S_MPUB)}, {s(S_MPUB)}, {MEM_SZ}"]
    dfr = cfg["defer"][w]
    if dfr >= 1: wk += ds; ds = []
    wk += dsv
    if dfr >= 2: wk += va[6:]; va = va[:6]
    FT = Mc(oth[4])
    Lfq, Lfqb = A.newlabel("fq"), A.newlabel("fqb")
    FW = cfg["fw"]
    def fqcheck():
        A(f"ds_read_b32 {v(FT)}, {v(V_L4)} offset:{L_FL}")
        A(f"s_add_u32 {s(S_T)}, {s(S_STEP)}, 1")
        A(f"s_lshl_b32 {s(S_T)}, {s(S_T)}, 2")
        A("s_waitcnt lgkmcnt(0)")
        A.label(Lfqb)
        A(f"v_mad_u32_u24 {v(FT)}, {v(FT)}, 12, {v(V_L4)}")
        A(f"v_cmp_ge_u32 vcc, {s(S_T)}, {v(FT)}")
        A(f"s_and_b64 vcc, vcc, {s(S_FM,2)}")
        A(f"s_cbranch_scc1 {Lfq}")
    nb, na = cfg["nb"][w], cfg["na"][w]
    gap = cfg["pre2a"][w]
    for d in range(nb):
        wk = spread(A, wk, gap); A("\n".join(h2ld)); gap = cfg["gap2"][w]
    cw = cfg["cw"]
    HR = Mc(oth[3])
    hld = f"global_load_dword {v(HR)}, {v(V_L4)}, {s(S_HLD,2)} sc1"
    if w == cw:
        Lc, Lco = A.newlabel("cl"), A.newlabel("clo")
        A.label(Lc)
        for d in range(4):
            A(f"v_cmp_gt_u32 vcc, {s(S_STEP)}, {v(HR)}")
            A(hld)
            if diag: A(f"s_add_u32 {s(S_CNT)}, {s(S_CNT)}, 0x10000")
            if d == 3:
                A("\n".join(budget)); A("s_waitcnt vmcnt(24)")
                A(f"s_and_b32 vcc_lo, vcc_lo, {s(S_ALIVE)}"); A(f"s_cbranch_scc1 {Lc}")
            else:
                A("s_cmp_eq_u32 vcc_lo, 0"); A(f"s_cbranch_scc1 {Lco}")
        A.label(Lco)
    if cfg["ba"]: A("s_barrier")
    stamp(0)
    gap = cfg["pre2b"][w]
    for d in range(na):
        wk = spread(A, wk, gap); A("\n".join(h2ld)); gap = cfg["gap2"][w]
    for x in wk: A(x)
    if w == FW and cfg["flags"]: fqcheck()
    Lh2, Lh2c = A.newlabel("h2"), A.newlabel("h2c")
    m = Mc(f0)
    chk = [f"v_maximum3_f32 {v(V_T0)}, {v(m)}, {v(m+1)}, {v(m+2)}",
           f"v_maximum3_f32 {v(V_T0)}, {v(V_T0)}, {v(m+3)}, {v(m+4)}",
           f"v_maximum3_f32 {v(V_T0)}, {v(V_T0)}, {v(m+5)}, {v(m+6)}",
           f"v_cmp_u_f32 vcc, {v(V_T0)}, {v(m+7)}"]
    msw = [f"ds_write_b128 {v(V_L16)}, {v(Mc(k),4)} offset:{L_MS + k*1024}" for k in (f0, f1)]
    A(f"s_waitcnt vmcnt({2*(nb+na-1)}) lgkmcnt(0)")
    for x in chk + msw: A(x)
    A(f"s_cbranch_vccnz {Lh2}")
    A.label(Lh2c)
    stamp(1)
    qq = lambda k: [SM(q0, Mc(k), Bq(k,0)), SM(q1, Mc(k), Bq(k,1))]
    kk_ = lambda k: [SM(k0, Mc(k), Bk(k,0)), SM(k1, Mc(k), Bk(k,1))]
    vv = lambda k: [SM(va0, Mc(k), Bv(k,0)), SM(va1, Mc(k), Bv(k,1))]
    T0, T1, Tm, PA0 = V_A, V_A + 4, V_A + 8, V_A + 12
    qf = [V_H, V_H + 4, Mc(f0), Mc(f1)]
    kf = [Mc(oth[0]), Mc(oth[1])]
    Kx = lambda kt, ks: V_X + 4*(4*kt + ks)
    mf = qq(f0) + kk_(f0) + qq(f1) + kk_(f1) + vv(f0) + vv(f1)
    for k in oth: mf += qq(k)
    for k in oth: mf += kk_(k)
    for k in oth: mf += vv(k)
    for ks in range(4): mf.append(MF(T0, Kx(0,ks), qf[ks], T0 if ks else None))
    for ks in range(4): mf.append(MF(T1, Kx(1,ks), qf[ks], T1 if ks else None))
    mf += [SM(Tm, kf[0], qf[0]), SM(Tm, kf[1], qf[2])]
    pre, dsq, vmq, post, vaq = {}, {}, {}, {}, {}
    bc = cfg["bc"][w]
    add(pre, bc, "s_waitcnt lgkmcnt(0)", "s_barrier")
    tags = {}
    nods = {cfg["bq"], cfg["b1"], cfg["bk"]} | ({bc} if cfg["bcds"] else set())
    def put_ds(pos, ins, tag=None):
        while pos in dsq or pos in nods: pos += 1
        dsq[pos] = [ins]
        if tag: tags[tag] = pos
        return pos
    for i, k in enumerate(oth): put_ds(bc + i, ldsrd(Mc(k), V_L16, L_MS + k*1024), f"m{i}")
    for i in range(8): put_ds(bc + 6, ldsrd(V_X + 4*i, V_L16, L_KX + i*1024))
    for i, x in enumerate([f"v_add_f32 {v(q0)}, {v(q0)}, {v(q0+2)}", f"v_add_f32 {v(q0+1)}, {v(q0+1)}, {v(q0+3)}",
                           f"v_add_f32 {v(q1)}, {v(q1)}, {v(q1+2)}", f"v_add_f32 {v(q1+1)}, {v(q1+1)}, {v(q1+3)}",
                           f"v_cvt_pk_bf16_f32 {v(q0)}, {v(q0)}, {v(q1)}", f"v_cvt_pk_bf16_f32 {v(q0+1)}, {v(q0+1)}, {v(q1+1)}"]):
        add(vaq, 24 + i, x)
    put_ds(30 + (w & 1), f"ds_write2_b32 {v(V_QW)}, {v(q0)}, {v(q0+1)} offset0:0 offset1:{QO_RS}")
    bq = cfg["bq"]
    for i in range(4): put_ds(bq + i, ldsrd(qf[i], V_QR, 64*i), f"q{i}")
    kc = [f"v_add_f32 {v(k0)}, {v(k0)}, {v(k0+2)}", f"v_add_f32 {v(k0+1)}, {v(k0+1)}, {v(k0+3)}",
          f"v_add_f32 {v(k1)}, {v(k1)}, {v(k1+2)}", f"v_add_f32 {v(k1+1)}, {v(k1+1)}, {v(k1+3)}",
          f"v_cvt_pk_bf16_f32 {v(V_T0)}, {v(k0)}, {v(k1)}", f"v_cvt_pk_bf16_f32 {v(V_T1)}, {v(k0+1)}, {v(k1+1)}"]
    kst = 37 if bq == 36 else 36
    for i, x in enumerate(kc): add(vaq, kst + i, x)
    put_ds(kst + 6 + (w & 1), f"ds_write2_b32 {v(V_KW)}, {v(V_T0)}, {v(V_T1)} offset0:0 offset1:4")
    b1 = cfg["b1"]
    put_ds(b1, ldsrd(kf[0], V_KR, 0)); put_ds(b1 + 1, ldsrd(kf[1], V_KR, 1088), "k1")
    zs = [zero2(Tm), zero2(Tm+2), zero2(PA0), zero2(PA0+2)]
    pos = kst + 6
    for x in zs:
        while pos == b1: pos += 1
        add(vaq, pos, x); pos += 1
    wo0 = [ldsrd(V_X + 4*i, V_WL, 2*4096 + i*1024) for i in range(8)]
    wo1 = {k: ldsrd(Mc(k), V_WL, 4*4096 + k*1024) for k in range(8)}
    wo3 = [ldsrd(V_X + 4*i, V_WL, 6*4096 + i*1024) for i in range(8)]
    for j, e in ((2, 41), (3, 43), (4, 45), (5, 47)): put_ds(e, wo1[oth[j]])
    nwo0 = cfg["nwo0"]
    for i in range(nwo0): put_ds(48 + i, wo0[i])
    assert max(dsq) <= 57
    mx, mb = V_T0, V_T1
    vlist = [(49, f"v_add_f32 {v(va0)}, {v(va0)}, {v(va0+2)}"), (49, f"v_add_f32 {v(va0+1)}, {v(va0+1)}, {v(va0+3)}"),
             (49, f"v_add_f32 {v(va1)}, {v(va1)}, {v(va1+2)}"), (49, f"v_add_f32 {v(va1+1)}, {v(va1+1)}, {v(va1+3)}"),
             (49, f"v_cvt_pk_bf16_f32 {v(V_VB+2)}, {v(va0)}, {v(va0+1)}"), (49, f"v_cvt_pk_bf16_f32 {v(V_VB+10)}, {v(va1)}, {v(va1+1)}"),
             (49, f"v_cvt_pk_bf16_f32 {v(V_VB+14)}, {v(va1)}, {v(va1+1)}"), (49, f"v_cvt_pk_bf16_f32 {v(V_VB+6)}, {v(va0)}, {v(va0+1)}"),
             (53, f"v_max3_f32 {v(mx)}, {v(T0)}, {v(T0+1)}, {v(T0+2)}"),
             (53, f"v_cndmask_b32 {v(T0)}, {v(T0)}, {v(T0+2)}, {s(S_HF,2)}"),
             (53, f"v_cndmask_b32 {v(T0+1)}, {v(T0+1)}, {v(T0+3)}, {s(S_HF,2)}"),
             (57, f"v_max3_f32 {v(mx)}, {v(mx)}, {v(T0+3)}, {v(T1)}"),
             (57, f"v_max3_f32 {v(mx)}, {v(mx)}, {v(T1+1)}, {v(T1+2)}"),
             (57, f"v_cndmask_b32 {v(T0+2)}, {v(T1)}, {v(T1+2)}, {s(S_HF,2)}"),
             (57, f"v_cndmask_b32 {v(T0+3)}, {v(T1+1)}, {v(T1+3)}, {s(S_HF,2)}"),
             (57, f"v_max_f32 {v(mx)}, {v(mx)}, {v(T1+3)}")]
    SENT = V_H + 2
    add(vaq, 2, f"v_mov_b32 {v(SENT)}, -1")
    add(post, 3, dma_v(w)[0])
    def put_vm(pos, ins):
        while pos in vmq or pos in pre or pos in (bq, b1, cfg["bk"], 11, 13, 17) or (pos in vaq and pos in dsq): pos += 1
        vmq[pos] = [ins]; return pos
    clr = [gst1(V_PUB, SENT, S_MPUB, 0, st)]
    put_vm(bc + 1, clr[0])
    skv = cfg["skv"]
    PT = V_H + 4
    ppre, prd, pst = pub_ops(w, PT)
    add(vaq, 0, ppre); dsq[1] = [prd]
    pv = cfg["pv"] + (w * skv) // 4
    p1 = put_vm(pv, dma_v(w)[2]); p2 = put_vm(p1 + skv, dma_v(w)[3]); add(post, p2, dma_k(w)[0])
    pp = cfg["ppub"] + (w & 1)
    for x in pst: pp = put_vm(pp, x) + 2
    bk = cfg["bk"]
    if bk < bq: add(pre, bk, "s_waitcnt lgkmcnt(0)", "s_barrier"); assert bk > bc + 13 and bk not in vmq
    p3 = put_vm(max(min(bk, bq) + 1 + (w * skv) // 4, p2 + 1), dma_k(w)[2]); p4 = put_vm(p3 + skv, dma_k(w)[3])
    if cfg["flags"]:
        if w == FW:
            add(post, p4, f"s_mov_b32 m0, {L_FL}")
            put_vm(p4 + 1, f"global_load_lds_dword {v(V_L4)}, {s(S_FQ,2)} sc1")
    pos = cfg["pclr"] + (w * cfg["sclr"]) // 4
    for i in range(8): pl = put_vm(pos, gst1(V_L4, SENT, S_PCL, 256*i, st)); pos += cfg["sclr"]
    assert pl < bq
    if tr:
        for i in range(8): add(vaq, 12 + i, f"v_writelane_b32 {v(V_H)}, {s(S_TM0+2*i)}, {i}")
        add(vaq, 20, f"v_writelane_b32 {v(V_H)}, {s(S_CNT)}, 8")
        add(vaq, 21, f"v_writelane_b32 {v(V_H)}, {s(S_CNT+1)}, 9")
        put_vm(26, gst1(V_L4, V_H, S_ACC, 0, ""))
    pos = 49; vi = 0; vdone = {}
    while vi < len(vlist) and pos < 57:
        cap = (1 if (pos in dsq or pos in vmq or pos >= 56) else 2) - len(vaq.get(pos, []))
        while cap > 0 and vi < len(vlist) and vlist[vi][0] <= pos:
            add(vaq, pos, vlist[vi][1]); vdone[vi] = pos; vi += 1; cap -= 1
        pos += 1
    tailv = [x[1] for x in vlist[vi:]]
    pubv = [gst1(V_L4, V_VB + 8*t + 2, S_KMO, 2048 + (2*w+t)*256, 'sc1') for t in range(2)]
    def nds(lo, hi): return sum(1 for p in dsq if lo < p <= hi)
    for j, jj in ((0, 0), (1, 2), (3, 5)):
        add(post, 11 + 2*j, f"s_waitcnt lgkmcnt({nds(tags[f'm{jj}'], 11 + 2*j)})")
    nvb = sum(len(vmq[p]) for p in vmq if p < bq)
    add(pre, bq, f"s_waitcnt vmcnt({nvb}) lgkmcnt(0)", "s_barrier")
    kwp = [p for p in dsq if dsq[p][0].startswith(f"ds_write2_b32 {v(V_KW)}")][0]
    add(pre, b1, f"s_waitcnt lgkmcnt({nds(kwp, b1 - 1)})", "s_barrier")
    if b1 > 47: add(post, 47, f"s_waitcnt lgkmcnt({nds(tags['q3'], 47)})")
    add(post, 55, f"s_waitcnt lgkmcnt({nds(tags['k1'], 55)})")
    add(post, 33, f"s_cmp_eq_u32 {s(S_STEP)}, 63")
    fill = {}
    for i in range(len(mf)):
        for d in (pre, dsq, vmq, post, vaq):
            if i in d: add(fill, i, *d[i])
        if i == 35 and cfg.get("stamps") and not cfg.get("fine"): add(fill, i, f"s_memtime {s(S_TM0+4,2)}")
        if i == 50 and cfg.get("stamps") and not cfg.get("fine"): add(fill, i, f"s_memtime {s(S_TM0+6,2)}")
    kq = len(A.lines)
    stream(A, mf, fill)
    used = len(fill.get(57, []))
    lead = max(0, 2 - used)
    nops(A, lead)
    extra = [zero2(va1), zero2(va1+2)]
    while len(tailv) + used + lead < 8 and extra: tailv.append(extra.pop(0))
    for x in tailv: A(x)
    nops(A, 8 - len(tailv) - used - lead)
    A(f"v_pk_add_f32 {v(Tm,2)}, {v(Tm,2)}, {v(Tm+2,2)}")
    A(f"v_max3_f32 {v(mb)}, {v(mx)}, {v(Tm)}, {v(Tm+1)}")
    A(f"v_max3_f32 {v(mx)}, {v(mx)}, {v(Tm)}, {v(Tm+1)}")
    A(f"v_cndmask_b32 {v(Tm)}, {v(Tm)}, {v(Tm+1)}, {s(S_HF,2)}")
    A(f"v_mov_b64 {v(V_H,2)}, {s(S_ONE,2)}")
    A(f"v_permlane32_swap_b32 {v(mx)}, {v(mb)}")
    A(f"v_max_f32 {v(Tm+2)}, {v(mx)}, {v(mb)}")
    A(f"v_max_f32 {v(Tm+3)}, {v(mx)}, {v(mb)}")
    A(f"v_mov_b64 {v(V_H+2,2)}, {s(S_ONEZ,2)}")
    A(extra.pop(0) if extra else "s_nop 0")
    A(f"v_permlane16_swap_b32 {v(Tm+2)}, {v(Tm+3)}")
    A(f"v_max_f32 {v(mx)}, {v(Tm+2)}, {v(Tm+3)}")
    A(f"v_mul_f32 {v(mx)}, {s(S_NC)}, {v(mx)}")
    A(f"v_pk_fma_f32 {v(T0,2)}, {v(T0,2)}, {s(S_C,2)}, {v(mx,2)} op_sel_hi:[1,1,0]")
    A(f"v_pk_fma_f32 {v(T0+2,2)}, {v(T0+2,2)}, {s(S_C,2)}, {v(mx,2)} op_sel_hi:[1,1,0]")
    A(f"v_fma_f32 {v(Tm)}, {v(Tm)}, {s(S_C)}, {v(mx)}")
    P = T1
    A(f"v_exp_f32 {v(T0)}, {v(T0)}")
    A(f"v_exp_f32 {v(T0+1)}, {v(T0+1)}")
    A(f"v_exp_f32 {v(T0+2)}, {v(T0+2)}")
    A(f"v_exp_f32 {v(T0+3)}, {v(T0+3)}")
    A(f"v_exp_f32 {v(Tm)}, {v(Tm)}")
    A(f"v_cvt_pk_bf16_f32 {v(P)}, {v(T0)}, {v(T0+1)}")
    A(f"v_cvt_pk_bf16_f32 {v(P+2)}, {v(T0+2)}, {v(T0+3)}")
    A(f"v_cvt_pk_bf16_f32 {v(P+1)}, {v(Tm)}, 0")
    A(f"v_cvt_pk_bf16_f32 {v(P+3)}, {v(Tm)}, 0")
    A(extra.pop(0) if extra else "s_nop 0"); A("s_nop 0")
    stamp(4)
    SU = va0
    mf = [MF(SU, P, V_H), SM(PA0, P, V_VB, True), SM(va1, P, V_VB + 8, True)]
    w0r = wo0[nwo0:]
    fill = {0: w0r[:2], 1: w0r[2:3], 2: (w0r[3:4] + ["s_nop 0", "s_nop 0"])[:2]}
    w0r = w0r[4:]
    stream(A, mf, fill)
    A(f"v_add_f32 {v(SU)}, {v(SU)}, {v(SU+2)}")
    A(f"v_add_f32 {v(SU+1)}, {v(SU+1)}, {v(SU+3)}")
    A(f"v_rcp_f32 {v(SU)}, {v(SU)}")
    A(f"v_rcp_f32 {v(SU+1)}, {v(SU+1)}")
    A(f"v_pk_add_f32 {v(PA0,2)}, {v(PA0,2)}, {v(PA0+2,2)}")
    A(f"v_pk_mul_f32 {v(PA0,2)}, {v(PA0,2)}, {v(SU,2)}")
    A(f"v_pk_add_f32 {v(va1,2)}, {v(va1,2)}, {v(va1+2,2)}")
    A(f"v_pk_mul_f32 {v(va1,2)}, {v(va1,2)}, {v(SU,2)}")
    A(f"v_cvt_pk_bf16_f32 {v(V_T0)}, {v(PA0)}, {v(va1)}")
    A(f"v_cvt_pk_bf16_f32 {v(V_T1)}, {v(PA0+1)}, {v(va1+1)}")
    A(f"ds_write2_b32 {v(V_QW)}, {v(V_T0)}, {v(V_T1)} offset0:64 offset1:{QO_RS+64}")
    rest1 = [wo1[k] for k in sorted([f0, f1, oth[0], oth[1]])]
    acc = [va0, va1, V_VB + 4, V_VB + 12]
    for x in acc:
        A(zero2(x)); A(zero2(x+2))
    assert len(w0r) <= 1
    mid = w0r + rest1[:1]
    for x in mid: A(x)
    A(f"s_cbranch_scc1 {Lexit}")
    lastclr = max(i for i in range(kq, len(A.lines)) if A.lines[i] in [c.strip() for c in clr])
    ncl = sum(1 for x in A.lines[lastclr+1:] if x.startswith("global_"))
    A(f"s_waitcnt vmcnt({ncl}) lgkmcnt({len(mid)})")
    A("s_barrier")
    of = [V_A + 4*i for i in range(4)]
    for i in range(4): A(ldsrd(of[i], V_QR, 256 + 64*i))
    stamp(5)
    Bo = lambda q, ks: {0: V_X, 2: V_M, 1: reg[("o",1,0)], 3: V_X}[q] + 8*ks
    assert reg[("o",1,1)] == reg[("o",1,0)] + 16
    mf = [SM(acc[q], of[ks], Bo(q, ks)) for q in range(4) for ks in range(4)]
    def cv(q, b): return f"v_cvt_pk_bf16_f32 {v(acc[q]+b)}, {v(acc[q]+b)}, {v(acc[q]+b+2)}"
    def stp(q, b): return gst1(V_PST, acc[q]+b, S_PST + 2*b, q*2048 - 4096, st)
    h1ld = [f"global_load_dword {v(V_H+i)}, {v(V_L4)}, {s(S_PLD,2)} offset:{256*i} sc1" for i in range(8)]
    A("s_waitcnt lgkmcnt(3)")
    fill = {0: [rest1[1], "s_waitcnt lgkmcnt(3)"], 1: [rest1[2], "s_waitcnt lgkmcnt(3)"], 2: [rest1[3], "s_waitcnt lgkmcnt(3)"],
            3: [wo3[0]], 4: [wo3[1]], 5: [wo3[2], cv(0,0)], 6: [stp(0,0), cv(0,1)],
            7: [stp(0,1), wo3[3], "s_waitcnt lgkmcnt(4)"], 8: [wo3[4], wo3[5]], 9: [wo3[6], cv(1,0)], 10: [stp(1,0), cv(1,1)],
            11: [stp(1,1), wo3[7], "s_waitcnt lgkmcnt(4)"],
            13: ["s_waitcnt lgkmcnt(2)", cv(2,0)], 14: [stp(2,0), "s_waitcnt lgkmcnt(0)", cv(2,1)], 15: [stp(2,1)]}
    e1 = cfg["e1"][w]
    sp = cfg["sp"]
    for pp in (8, 12):
        if pp not in e1 and sp: add(fill, pp, f"s_nop {sp + (2 if pp == 12 else 0)}")
    for pp in e1:
        if pp < 16: fill.setdefault(pp, [])[0:0] = h1ld
    k0_ = len(A.lines)
    stream(A, mf, fill)
    sal = [f"s_xor_b32 {s(S_PST+2*i)}, {s(S_PST+2*i)}, {PART_SZ}" for i in range(2)] + \
          ["\n".join(adv(S_KMO, 4096)), f"s_add_u32 {s(S_STEP)}, {s(S_STEP)}, 1", "\n".join(adv(S_KV, 16384)), "\n".join(adv(S_KV2, 16384)),
           f"s_xor_b32 {s(S_PCL)}, {s(S_PCL)}, {PART_SZ}", f"s_xor_b32 {s(S_MLD)}, {s(S_MLD)}, {MEM_SZ}"]
    if tr: sal.append("\n".join(adv(S_ACC, 256)))
    if 16 in e1:
        A("\n".join(h1ld))
    else:
        A("s_nop 0")
        for x in va[:6]: A(x)
        va = va[6:]
    nops(A, cfg["sp3"])
    A(cv(3,0)); A(cv(3,1)); A(stp(3,0)); A(stp(3,1))
    stamp(6)
    work = []
    while va or sal:
        work += va[:1] + sal[:1]; va = va[1:]; sal = sal[1:]
    work += ds
    natt = len(e1)
    gap = cfg["pre1"][w]
    while natt < D1:
        work = spread(A, work, gap)
        A("\n".join(h1ld))
        natt += 1
        gap = cfg["gap1"][w]
    if w == cfg["pw_"] and cw >= 0:
        work = spread(A, work, cfg["hy"])
        assert not any(s(S_STEP) + "," in x for x in work)
        A(f"v_mov_b32 {v(V_T0)}, {s(S_STEP)}")
        A(gst1(V_VB + 11, V_T0, S_HPUB, 0, st))
    if w == cw:
        gap = cfg["hs"]
        A(f"v_mov_b32 {v(HR)}, 0")
        for d in range(cfg["hn"]):
            work = spread(A, work, gap); A(hld); gap = cfg["hg"]
    for x in work: A(x)
    vmo = [x for x in A.lines[k0_:] if x.startswith("global_")]
    starts = [i for i, x in enumerate(vmo) if x == h1ld[0]]
    total = len(vmo)
    R = Mc(oth[2])
    EXP, EXA = f"s_mov_b64 exec, {s(S_HM,2)}", "s_mov_b64 exec, -1"
    def publish():
        A(f"v_cvt_pk_bf16_f32 {v(V_T1)}, {v(R)}, {v(R+1)}")
        A(gst1(V_PUB, V_T1, S_MPUB, 0, st))
        A(f"v_cmp_u_f32 vcc, {v(R)}, {v(R+1)}")
        A(EXA)
    A(f"s_waitcnt vmcnt({total - starts[0] - 4})")
    A(MF(R, V_SEL, V_H))
    A(f"s_waitcnt vmcnt({total - starts[0] - 8})")
    A(MF(R, V_SEL, V_H + 4, R))
    if w == cw: A(hld); A("s_nop 5")
    else: A("s_nop 6")
    A(EXP)
    for d in range(cfg["u1"][w]):
        publish()
        if d == 0: stamp(7)
        A(MF(R, V_SEL, V_H)); A(MF(R, V_SEL, V_H + 4, R))
        A(f"s_cbranch_vccz {Lloop}")
        A("\n".join(h1ld))
        if diag: A(f"s_add_u32 {s(S_CNT)}, {s(S_CNT)}, 1")
        A(EXP)
    Lh1w = A.newlabel("h1w")
    A.label(Lh1w)
    publish()
    if cfg["u1"][w] == 0: stamp(7)
    A(f"s_and_b64 vcc, vcc, {s(S_ALIVE,2)}")
    A(f"s_cbranch_scc0 {Lloop}")
    if cfg.get("fine"):
        cnt = 0; k = _start; fine = list(cfg["fine"])
        while k < len(A.lines):
            if "mfma" in A.lines[k]:
                if cnt in fine:
                    A.lines.insert(k + 1, f"s_memtime {s(S_TM0+2*fine.index(cnt),2)}")
                cnt += 1
            k += 1
    if cfg.get("stamps") == 1:
        k = [i for i in range(_start, len(A.lines)) if A.lines[i].startswith("v_permlane32")][0]
        ins = ["s_cselect_b32 s35, 1, 0"]
        for i in range(8 if not cfg.get("fine") else 1):
            ins += [f"s_sub_u32 {s(S_T)}, {s(S_TM0+2*((i+1)%8))}, {s(S_TM0+2*i)}", f"s_add_u32 {s(S_ACC+i)}, {s(S_ACC+i)}, {s(S_T)}"]
        ins += ["s_cmp_eq_u32 s35, 1"]
        A.lines[k:k] = ins
    A(f"s_waitcnt vmcnt({cfg['f1'][w]})")
    A(MF(R, V_SEL, V_H)); A(MF(R, V_SEL, V_H + 4, R))
    A("\n".join(h1ld))
    A("\n".join(budget))
    if diag: A(f"s_add_u32 {s(S_CNT)}, {s(S_CNT)}, 1")
    A(EXP)
    A(f"s_branch {Lh1w}")
    if w == FW and cfg["flags"]:
        A.label(Lfq)
        A(f"global_load_dword {v(FT)}, {v(V_L4)}, {s(S_FQ,2)} sc1")
        A("\n".join(budget))
        A(f"s_and_b64 {s(S_FM,2)}, {s(S_FM,2)}, {s(S_ALIVE,2)}")
        A("s_waitcnt vmcnt(0)")
        A(f"s_branch {Lfqb}")
    A.label(Lh2)
    A("\n".join(h2ld))
    A("\n".join(budget))
    if diag: A(f"s_add_u32 {s(S_CNT+1)}, {s(S_CNT+1)}, 1")
    A(f"s_waitcnt vmcnt({cfg['f2'][w]})")
    for x in chk + msw: A(x)
    A(f"s_and_b64 vcc, vcc, {s(S_ALIVE,2)}")
    A(f"s_cbranch_scc0 {Lh2c}")
    A(f"s_branch {Lh2}")
    for i in range(_start, len(A.lines)):
        ln = A.lines[i]
        if cfg.get("nodma") and ln.startswith("s_add_u32") and ln.endswith(", 16384"): A.lines[i] = ln.replace(", 16384", ", 0")
        if cfg.get("nopub") and ln.startswith("global_store") and s(S_KMO,2) in ln: A.lines[i] = ln.replace(" sc1", "")
        if cfg.get("nopub") and ln.startswith("s_add_u32") and ln.endswith(", 4096"): A.lines[i] = ln.replace(", 4096", ", 0")
        if cfg.get("noclr") and ln.startswith("v_mov_b") and ln.endswith(", -1"): A.lines[i] = ln.replace("-1", "0")
    A.label(Lexit)
    return Lloop
```

```python
import sys
from asmlib import *
from common import *
import chain as C
import bg
from bg import srd, spin, BUD

def arrive(A, vz, vt):
    A(f"v_mov_b32 {v(vt)}, 1")
    A("s_mov_b64 exec, 1")
    A(f"global_atomic_add {v(vz)}, {v(vt)}, {s(S_DBG,2)} offset:{D_ARR}")
    A("s_mov_b64 exec, -1")

def chain_role(A, cfg):
    diag = cfg.get("diag")
    A(f"s_load_dwordx4 s[80:83], s[0:1], {KA['B_Wq']}")
    A(f"s_load_dwordx4 s[84:87], s[0:1], {KA['B_Wv']}")
    A(f"s_load_dwordx2 s[88:89], s[0:1], {KA['B_mem0']}")
    A("s_waitcnt lgkmcnt(0)")
    srd(A, C.S_WQ, 80, 4 << 20); srd(A, C.S_WK, 82, 4 << 20); srd(A, C.S_WV, 84, 4 << 20); srd(A, C.S_WO, 86, 4 << 20)
    srd(A, C.S_AUX, 88, 8192)
    def by_wave(base):
        labs = [A.newlabel(f"{base}{w}") for w in range(4)]
        for w in range(1, 4):
            Ln = A.newlabel("nx")
            A(f"s_cmp_eq_u32 {s(S_W)}, {w}")
            A(f"s_cbranch_scc0 {Ln}")
            A(f"s_branch {labs[w]}")
            A.label(Ln)
        return labs
    t = C.V_VA
    VZ = C.V_VB + 11
    A(f"v_bfe_u32 {v(t+2)}, {v(C.V_L16)}, 4, 4")
    A(f"v_lshlrev_b32 {v(t+2)}, 1, {v(t+2)}")
    A(f"s_and_b32 {s(S_T)}, {s(S_H)}, 3")
    A(f"s_lshl_b32 {s(S_T)}, {s(S_T)}, 11")
    A(f"s_bfe_u32 {s(S_T+1)}, {s(S_H)}, 0x10002")
    A(f"s_lshl_b32 {s(S_T+1)}, {s(S_T+1)}, 10")
    A(f"s_add_u32 {s(S_T)}, {s(S_T)}, {s(S_T+1)}")
    A(f"s_lshr_b32 {s(S_T+1)}, {s(S_H)}, 3")
    A(f"s_lshl_b32 {s(S_T+1)}, {s(S_T+1)}, 6")
    A(f"s_add_u32 {s(S_T)}, {s(S_T)}, {s(S_T+1)}")
    A(f"s_lshl_b32 {s(S_T+1)}, {s(S_W)}, 8")
    A(f"s_add_u32 {s(S_T)}, {s(S_T)}, {s(S_T+1)}")
    A(f"buffer_load_ushort {v(t+3)}, {v(t+2)}, {s(C.S_AUX,4)}, {s(S_T)} offen")
    A(f"buffer_load_ushort {v(t)}, {v(t+2)}, {s(C.S_AUX,4)}, {s(S_T)} offen offset:32")
    def h_init():
        labs = by_wave("cc"); Lj = A.newlabel("ccj")
        for w in range(4):
            A.label(labs[w]); C.chain_consts(A, w)
            if w < 3: A(f"s_branch {Lj}")
        A.label(Lj)
        for i in range(8): A(C.zero2(C.V_VB + 2*i))
        A(f"v_mov_b64 {v(t+4,2)}, -1")
        A(f"v_mov_b64 {v(t+6,2)}, -1")
        A(f"v_lshl_or_b32 {v(C.V_T0)}, {v(t)}, 16, {v(t+3)}")
        for so in (C.S_PLD, C.S_PCL):
            A(f"global_store_dwordx4 {v(C.V_L16)}, {v(t+4,4)}, {s(so,2)} sc1")
            A(f"global_store_dwordx4 {v(C.V_L16)}, {v(t+4,4)}, {s(so,2)} offset:1024 sc1")
        A(C.gst1(C.V_PUB, t+4, C.S_MPUB, 0, "sc1"))
        A(f"s_xor_b32 {s(C.S_MPUB)}, {s(C.S_MPUB)}, {C.MEM_SZ}")
        A(C.gst1(C.V_PUB, C.V_T0, C.S_MPUB, 0, "sc1"))
        return 6
    def h_arrive():
        Ls = A.newlabel("arr")
        A(f"s_cmp_eq_u32 {s(S_W)}, 0")
        A(f"s_cbranch_scc0 {Ls}")
        A(f"v_mov_b32 {v(C.V_T0)}, 0x10000")
        A("s_mov_b64 exec, 1")
        A(f"global_atomic_add {v(VZ)}, {v(C.V_T0)}, {s(S_DBG,2)} offset:{D_ARR}")
        A("s_mov_b64 exec, -1")
        A.label(Ls)
        return 0
    def h_warm():
        for so in (C.S_PLD, C.S_PCL):
            A(C.gld4(t, so, 0)); A(C.gld4(t, so, 1024))
        A(f"s_xor_b32 {s(C.S_MLD)}, {s(C.S_MLD)}, {C.MEM_SZ}")
        A(C.gld4(t, C.S_MLD, 0)); A(C.gld4(t, C.S_MLD, 1024))
        A(f"s_xor_b32 {s(C.S_MLD)}, {s(C.S_MLD)}, {C.MEM_SZ}")
        A(C.gld4(t, C.S_MLD, 0)); A(C.gld4(t, C.S_MLD, 1024))
        return 8
    C.emit_loader(A, {0: h_init, 8: h_arrive, 25: h_warm}, cfg["nt"])
    if diag: A("s_memrealtime s[22:23]")
    A("s_waitcnt vmcnt(0) lgkmcnt(0)")
    C.chain_consts2(A, 0, cfg)
    A(f"s_xor_b32 {s(C.S_PLD)}, {s(C.S_PLD)}, {PART_SZ}")
    A(f"s_mov_b32 {s(S_T)}, {(32 << 16) + cfg['narr']}")
    spin(A, f"global_load_dword {v(C.V_T0)}, {v(VZ)}, {s(S_DBG,2)} offset:{D_ARR} sc1",
         f"v_cmp_ne_u32 vcc, {s(S_T)}, {v(C.V_T0)}", 0)
    A(f"global_load_dword {v(C.V_T1)}, {v(VZ)}, {s(S_DBG,2)} offset:{D_TK[0]} sc1")
    if cfg["flags"]:
        spin(A, f"global_load_dword {v(C.V_T0)}, {v(VZ)}, {s(C.S_FQ,2)} sc1", f"v_cmp_eq_u32 vcc, 0, {v(C.V_T0)}", 0)
    labs = by_wave("chain_w")
    for w in range(4):
        A.label(labs[w])
        for x in C.dma_k(w) + C.dma_v(w): A(x)
        if w == cfg["fw"] and cfg["flags"]:
            A(f"s_mov_b32 m0, {C.L_FL}"); A("s_nop 0")
            A(f"global_load_lds_dword {v(C.V_L4)}, {s(C.S_FQ,2)} sc1")
        C.park_first(A, w)
        ds, dsv, va = C.chores(w)
        for x in ds + va: A(x)
        for x in C.adv(C.S_KV, 16384) + C.adv(C.S_KV2, 16384): A(x)
        A("s_waitcnt vmcnt(0) lgkmcnt(0)")
        A(f"v_readfirstlane_b32 s3, {v(C.V_T1)}")
        if diag:
            for i in range(8): A(f"s_mov_b32 {s(C.S_ACC+i)}, 0")
            if cfg.get('stamps') == 1:
                for i in range(8): A(f"s_memtime {s(C.S_TM0+2*i,2)}\ns_waitcnt lgkmcnt(0)")
            if cfg.get("stamps") == 2:
                A(f"s_lshl_b32 {s(S_T)}, {s(S_H)}, 16")
                A(f"s_add_u32 {s(S_T)}, {s(S_T)}, {WS_STAT + 0x100000 + w*16384}")
                A(f"s_add_u32 {s(C.S_ACC)}, {s(S_WS)}, {s(S_T)}")
                A(f"s_addc_u32 {s(C.S_ACC+1)}, {s(S_WS+1)}, 0")
                for i in range(16): A(f"s_mov_b32 {s(C.S_TM0+i)}, 0")
            A(f"s_memtime s[66:67]")
            A(f"s_memrealtime s[98:99]")
            A("s_waitcnt lgkmcnt(0)")
        Lslow, Ldone = A.newlabel("slow"), A.newlabel("done")
        A(f"s_cmp_lt_u32 s3, {33 if cfg.get('forceslow') else 32}")
        A(f"s_cbranch_scc1 {Lslow}")
        A(".p2align 6")
        C.emit_step_loop(A, w, cfg, "")
        A(f"s_branch {Ldone}")
        A.label(Lslow)
        if not cfg.get("noslow"): C.emit_step_loop(A, w, cfg, "sc1")
        A.label(Ldone)
        ppre, prd, pst = C.pub_ops(w, C.V_H + 4)
        A(ppre); A(prd)
        for x in C.adv(C.S_KMO, 4096): A(x)
        A(pst[0]); A(pst[1]); A("s_waitcnt lgkmcnt(0)"); A(pst[2]); A(pst[3])
        if diag:
            A(f"s_memtime s[68:69]")
            A(f"s_memrealtime s[100:101]")
            A("s_waitcnt lgkmcnt(0)")
            A(f"s_sub_u32 {s(S_T)}, s68, s66")
            vals = [s(S_T), s(C.S_CNT), s(C.S_CNT+1), "s97", "s96", "s98", "s100", "s22"] + [s(C.S_ACC+i) for i in range(8)]
            for i, x in enumerate(vals): A(f"v_mov_b32 v{16+i}, {x}")
            A(f"s_lshl_b32 {s(S_T)}, {s(S_H)}, 8")
            A(f"s_add_u32 {s(S_T)}, {s(S_T)}, {WS_STAT + w*64}")
            A("v_mov_b32 v40, 0")
            for i in range(4): A(f"buffer_store_dwordx4 v[{16+4*i}:{19+4*i}], v40, {s(S_WS,4)}, {s(S_T)} offen offset:{16*i}")
        A("s_endpgm")

def build(cfg):
    A = Asm()
    K = NAME + "_kernel"
    A.label(K)
    A("s_cmp_lt_u32 s2, 256")
    A("s_cbranch_scc1 L_go")
    A("s_endpgm")
    A.label("L_go")
    A(f"s_load_dwordx4 s[80:83], s[0:1], {KA['dbg']}")
    if cfg.get("diag"): A("s_memrealtime s[96:97]")
    A("s_getreg_b32 s3, hwreg(HW_REG_XCC_ID, 0, 4)")
    if cfg.get("fakexcc"): A(cfg["fakexcc"])
    A("v_lshrrev_b32 v1, 6, v0")
    A("v_and_b32 v0, 63, v0")
    A(f"v_readfirstlane_b32 {s(S_W)}, v1")
    A("v_lshlrev_b32 v4, 2, v0")
    A("v_lshlrev_b32 v0, 4, v0")
    A("v_mov_b32 v3, 0")
    A(f"s_mov_b64 {s(S_ALIVE,2)}, -1")
    A(f"s_mov_b32 {s(S_BUD)}, {BUDGET}")
    A("s_waitcnt lgkmcnt(0)")
    srd(A, S_DBG, 80, 256); srd(A, S_WS, 82, WS_SIZE)
    A(f"s_cmp_eq_u32 {s(S_W)}, 0")
    A("s_cbranch_scc0 L_tk")
    A("s_lshl_b32 s70, s3, 2")
    A("s_cmp_lt_u32 s3, 4")
    A("s_cselect_b32 s71, 60, 112")
    A("s_add_u32 s70, s70, s71")
    A("s_cmp_eq_u32 s3, 0")
    A("s_cselect_b32 s70, 0, s70")
    A("s_cmp_lt_u32 s3, 8")
    A("s_cselect_b32 s70, s70, 252")
    A("v_mov_b32 v2, 1")
    A("v_mov_b32 v5, s70")
    A("s_lshl_b32 s71, s2, 8")
    A("s_mov_b64 exec, 1")
    A(f"global_atomic_add v2, v5, v2, {s(S_DBG,2)} sc0")
    A("s_mov_b64 exec, -1")
    A(f"buffer_store_dword v3, v4, {s(S_WS,4)}, s71 offen sc1")
    A("s_waitcnt vmcnt(1)")
    A("v_readfirstlane_b32 s72, v2")
    A("s_cmp_lt_u32 s3, 8")
    A("s_cselect_b32 s72, s72, 32")
    A("s_lshl_b32 s73, s3, 5")
    A("s_add_u32 s73, s73, s72")
    A("s_cmp_lt_u32 s72, 32")
    A("s_cbranch_scc1 L_have")
    A("s_waitcnt vmcnt(0)")
    arrive(A, 3, 2)
    A("v_mov_b32 v2, 1")
    A("s_mov_b64 exec, 1")
    A(f"global_atomic_add v2, v3, v2, {s(S_DBG,2)} offset:{D_OVF} sc0")
    A("s_mov_b64 exec, -1")
    A("s_waitcnt vmcnt(0)")
    A("v_readfirstlane_b32 s72, v2")
    A(f"s_movk_i32 {s(S_T)}, {cfg['narr']}")
    spin(A, f"global_load_ushort v2, v3, {s(S_DBG,2)} offset:{D_ARR} sc1", f"v_cmp_gt_u32 vcc, {s(S_T)}, v2")
    A(f"global_load_dword v2, v4, {s(S_DBG,2)} sc1")
    A("s_mov_b32 s73, 255")
    A("s_waitcnt vmcnt(0)")
    for x in range(8):
        Ln = A.newlabel("ov")
        A(f"v_readlane_b32 s74, v2, {D_TK[x] // 4}")
        A("s_min_u32 s74, s74, 32")
        A("s_add_u32 s72, s72, s74")
        A("s_cmp_lt_u32 s72, 32")
        A(f"s_cbranch_scc0 {Ln}")
        A(f"s_add_u32 s73, s72, {32 * x}")
        A("s_branch L_have2")
        A.label(Ln)
        A("s_sub_u32 s72, s72, 32")
    A("s_branch L_have2")
    A.label("L_have")
    A("v_mov_b32 v2, s73")
    A("ds_write_b32 v3, v2")
    A("s_waitcnt lgkmcnt(0)")
    A("s_barrier")
    A("s_waitcnt vmcnt(0)")
    arrive(A, 3, 2)
    A("s_branch L_tk2")
    A.label("L_have2")
    A("v_mov_b32 v2, s73")
    A("ds_write_b32 v3, v2")
    A("s_waitcnt lgkmcnt(0)")
    A.label("L_tk")
    A("s_barrier")
    A.label("L_tk2")
    A("ds_read_b32 v2, v3")
    A("s_waitcnt lgkmcnt(0)")
    A(f"v_readfirstlane_b32 {s(S_H)}, v2")
    A("s_barrier")
    if cfg.get("diag"):
        A(f"s_lshl_b32 s95, {s(S_H)}, 6"); A(f"s_lshl_b32 s94, {s(S_W)}, 4"); A("s_add_u32 s95, s95, s94")
        A("s_memrealtime s[98:99]"); A("s_waitcnt lgkmcnt(0)"); A("s_mov_b32 s100, s98"); A("s_mov_b32 s97, s98")
    roles = [(32, "chain"), (96, "qkv"), (32, "att"), (64, "b4"), (32, "a")]
    for n, nm in roles[:-1]:
        Ln = A.newlabel("rl")
        A(f"s_cmp_lt_u32 {s(S_H)}, {n}")
        A(f"s_cbranch_scc0 {Ln}")
        A(f"s_branch L_role_{nm}")
        A.label(Ln)
        A(f"s_sub_u32 {s(S_H)}, {s(S_H)}, {n}")
    A(f"s_and_b32 {s(S_H)}, {s(S_H)}, 31")
    en = cfg.get("roles", "chain qkv att b4 a").split()
    for nm, fn in (("a", bg.role_a), ("b4", bg.role_b4), ("att", bg.role_att), ("qkv", bg.role_qkv), ("chain", lambda A: chain_role(A, cfg))):
        A.label(f"L_role_{nm}")
        k0 = len(A.lines)
        if nm in en: fn(A)
        else: A("s_endpgm")
        if cfg.get("diag") and nm != "chain":
            out = []
            for ln in A.lines[k0:]:
                if ln.startswith(";mark"):
                    out += [f"s_memrealtime s[{ln.split()[1]}:{int(ln.split()[1])+1}]", "s_waitcnt lgkmcnt(0)"]
                elif ln == "s_endpgm":
                    out += ["s_waitcnt vmcnt(0)", "s_memrealtime s[54:55]", "s_waitcnt lgkmcnt(0)", "v_mov_b32 v16, s96", "v_mov_b32 v17, s54",
                            "v_mov_b32 v18, s98", "v_mov_b32 v19, s100", "v_mov_b32 v20, s95", f"v_add_u32 v20, {WS_STAT + 0x10000}, v20",
                            f"buffer_store_dwordx4 v[16:19], v20, {s(S_WS,4)}, 0 offen",
                            ln]
                else: out.append(ln)
            A.lines[k0:] = out
    errs = check_hazards(A.lines)
    head = f"""; @launch grid=(256,1,1) block=(256,1,1) lds=163840
.amdgcn_target "amdgcn-amd-amdhsa--gfx950"
.text
.globl {K}
.p2align 8
.type {K},@function
"""
    tail = f""".section .rodata,"a"
.p2align 6
.amdhsa_kernel {K}
  .amdhsa_next_free_vgpr 512
  .amdhsa_next_free_sgpr 102
  .amdhsa_accum_offset 256
  .amdhsa_group_segment_fixed_size 0
  .amdhsa_kernarg_size 112
  .amdhsa_user_sgpr_count 2
  .amdhsa_user_sgpr_kernarg_segment_ptr 1
  .amdhsa_system_sgpr_workgroup_id_x 1
.end_amdhsa_kernel
"""
    return head + A.text() + tail, errs

DEF = {"d1": [1, 1, 2, 2], "e1": [[], [], [], []], "pre1": [37, 45, 53, 61], "gap1": [0, 0, 16, 8], "u1": [0, 0, 0, 0], "f1": [9, 9, 9, 9], "nb": [0, 0, 0, 0], "na": [2, 2, 2, 2], "pre2a": [12, 28, 0, 0], "pre2b": [10, 11, 12, 13], "gap2": [30, 30, 30, 30], "f2": [2, 2, 2, 2], "ba": 1, "defer": [0, 0, 0, 0], "bc": [5, 5, 5, 6], "bk": 22, "bq": 35, "nwo0": 4, "bcds": 0, "pclr": 16, "sclr": 1, "pv": 7, "ppub": 8, "skv": 4, "b1": 49, "sp": 0, "sp3": 0,
       "cw": -1, "pw_": 3, "hy": 4, "hs": 30, "hn": 3, "hg": 9, "fw": 0, "flags": 1, "narr": 256, "nt": "", "diag": 0}
if __name__ == "__main__":
    txt, errs = build(DEF)
    open(sys.argv[1] if len(sys.argv) > 1 else "k.s", "w").write(txt)
    print("hazards:", len(errs))
    for e in errs: print(e)
```

```python
from asmlib import *
from common import *
import math, struct

def f2u(x): return struct.unpack("<I", struct.pack("<f", x))[0]
def MF(D, A, B, C=None):
    return f"v_mfma_f32_16x16x32_bf16 {r(D,4)}, {r(A,4)}, {r(B,4)}, " + ("0" if C is None else r(C,4))
def MF16(D, A, B, C=None):
    return f"v_mfma_f32_16x16x16_bf16 {r(D,4)}, {r(A,2)}, {r(B,2)}, " + ("0" if C is None else r(C,4))
def cvt(d, a, b): return f"v_cvt_pk_bf16_f32 {v(d)}, {v(a)}, {v(b)}"
def adv(reg, n): return f"s_add_u32 {s(reg)}, {s(reg)}, {n}\ns_addc_u32 {s(reg+1)}, {s(reg+1)}, 0"
def srd(A, sreg, ptr, size):
    A(f"s_mov_b32 {s(sreg)}, {s(ptr)}")
    A(f"s_and_b32 {s(sreg+1)}, {s(ptr+1)}, 0xffff")
    A(f"s_mov_b32 {s(sreg+2)}, {size:#x}")
    A(f"s_mov_b32 {s(sreg+3)}, 0x20000")
def wsptr(A, dst, off_sreg, const):
    A(f"s_add_u32 {s(off_sreg)}, {s(off_sreg)}, {const}")
    A(f"s_add_u32 {s(dst)}, {s(S_WS)}, {s(off_sreg)}")
    A(f"s_addc_u32 {s(dst+1)}, {s(S_WS+1)}, 0")
BUD = f"s_sub_u32 {s(S_BUD)}, {s(S_BUD)}, 1\ns_cselect_b64 {s(S_ALIVE,2)}, 0, {s(S_ALIVE,2)}"

def spin(A, load, cmp_fail, sleep=1):
    L, Lo = A.newlabel("spin"), A.newlabel("spino")
    A.label(L)
    A(load)
    A(BUD)
    A("s_waitcnt vmcnt(0)")
    A(cmp_fail)
    A(f"s_and_b64 vcc, vcc, {s(S_ALIVE,2)}")
    A(f"s_cbranch_scc0 {Lo}")
    if sleep: A(f"s_sleep {sleep}")
    A(f"s_branch {L}")
    A.label(Lo)

def wait_arrived(A, vt, vz):
    A(f"s_movk_i32 {s(S_T)}, 256")
    spin(A, f"global_load_ushort {v(vt)}, {v(vz)}, {s(S_DBG,2)} offset:{D_ARR} sc1", f"v_cmp_gt_u32 vcc, {s(S_T)}, {v(vt)}")

def lane_consts(A, t):
    A(f"v_lshrrev_b32 {v(t)}, 4, v0")
    A(f"v_and_b32 {v(t+1)}, 15, {v(t)}")
    A(f"v_lshrrev_b32 {v(t+2)}, 4, {v(t)}")
    A(f"v_lshrrev_b32 {v(t+3)}, 2, {v(t)}")
    A(f"v_and_b32 {v(t+4)}, 3, {v(t)}")
    A(f"v_and_b32 {v(t+5)}, 3, {v(t+3)}")

def bits(A, dst, terms, tmp, first=True):
    for (src, lo, n, mul) in terms:
        A(f"v_bfe_u32 {v(tmp)}, {v(src)}, {lo}, {n}")
        if first:
            A(f"v_mul_u32_u24 {v(dst)}, {mul}, {v(tmp)}"); first = False
        else:
            A(f"v_mul_u32_u24 {v(tmp)}, {mul}, {v(tmp)}")
            A(f"v_add_u32 {v(dst)}, {v(dst)}, {v(tmp)}")

S_RING = 60
def loader(A, seq, depth=8, pre=0):
    n_ = len(seq)
    def issue(n):
        e = seq[n]
        for i in range(4):
            A(f"s_add_u32 m0, {s(S_RING)}, {(n % depth) * 4096 + i * 1024}")
            A(f"s_mov_b32 {s(S_T)}, {e['so'](i)}")
            A(f"buffer_load_dwordx4 {v(e['vd'])}, {s(e['srd'],4)}, {s(S_T)} offen lds")
    for n in range(min(depth, n_)): issue(n)
    for n in range(n_):
        later = min(n_ - 1, n + depth - 1) - n
        A(f"s_waitcnt vmcnt({4 * later})")
        e = seq[n]
        for x in range(2):
            for part in range(2):
                for u in range(2):
                    A(f"ds_read_b64_tr_b16 {r(e['dst'] + 8*x + 4*part + 2*u, 2)}, {v(e['vt'])} offset:{(n % depth) * 4096 + e['off'](x, part, u)}")
        if n + depth < n_:
            A("s_waitcnt lgkmcnt(0)")
            issue(n + depth)
    A("s_waitcnt lgkmcnt(0)")

def coop_loader(A, seq, hooks=None, park=None, nt=""):
    hooks = hooks or {}
    n_ = len(seq); cnt = [0]; last = {}
    def issue(n):
        e = seq[n]
        for i in range(4):
            A(f"s_add_u32 m0, {s(S_RING)}, {(n % 8) * 4096 + i * 1024}")
            A(f"s_mov_b32 {s(S_T)}, {e['so'](i)}")
            A(f"buffer_load_dwordx4 {v(e['vd'])}, {s(e['srd'],4)}, {s(S_T)} offen {nt} lds")
        cnt[0] += 4; last[n] = cnt[0]
    def writeback(n):
        for p in range(4):
            A(f"ds_write_b128 {v(park[1])}, {v(park[0] + 16*(n&1) + 4*p, 4)} offset:{(n % 8) * 4096 + p*1024}")
    for n in range(min(7, n_)): issue(n)
    for n in range(n_):
        A(f"s_waitcnt vmcnt({min(63, cnt[0] - last[n])}) lgkmcnt(0)")
        A("s_barrier")
        if n in hooks: cnt[0] += hooks[n]()
        if n + 7 < n_: issue(n + 7)
        if n and seq[n-1]["dst"] is None: writeback(n - 1)
        e = seq[n]
        dst = e["dst"] if e["dst"] is not None else park[0] + 16*(n&1)
        for x in range(2):
            for part in range(2):
                for u in range(2):
                    ad, off = e["rd"](x, part, u)
                    A(f"ds_read_b64_tr_b16 {r(dst + 8*x + 4*part + 2*u, 2)}, {v(ad)} offset:{(n % 8) * 4096 + off}")
    A("s_waitcnt lgkmcnt(0)")
    A("s_barrier")
    if seq[-1]["dst"] is None: writeback(n_ - 1)

XRS = 1056
XBUF = 32 * XRS
P_XR, P_KS, P_Z, P_T = 1, 2, 3, 4
P_XF = 16
P_ACC = 32
P_E = 80
P_W = 128
S_SX = 8; S_S1, S_S2, S_S3 = 12, 16, 20
S_XO, S_XL, S_XD, S_N, S_CNTU = 34, 35, 36, 37, 38
S_P0, S_P1, S_P2, S_FL, S_P3 = 40, 42, 44, 46, 52
def wf(mat, ks, t): return P_W + 16 * (8 * mat + (ks >> 1)) + 8 * t + 4 * (ks & 1)
def acc(mat, rt, t): return P_ACC + 16 * mat + 8 * rt + 4 * t

def proj_setup(A, srds, rowstride, col_sreg, colbase):
    t = P_ACC
    lane_consts(A, t)
    vD, vT = P_T, P_XF
    A(f"s_lshl_b32 {s(S_T)}, {s(S_W)}, 4")
    A(f"v_add_u32 {v(t+6)}, {s(S_T)}, {v(t+2)}")
    A(f"s_mov_b32 {s(S_T)}, {rowstride}")
    A(f"v_mul_lo_u32 {v(vD)}, {s(S_T)}, {v(t+6)}")
    A(f"v_xor_b32 {v(t+6)}, {v(t+5)}, {v(t+2)}")
    A(f"v_lshl_add_u32 {v(vD)}, {v(t+6)}, 6, {v(vD)}")
    A(f"v_lshl_add_u32 {v(vD)}, {v(t+4)}, 4, {v(vD)}")
    A(f"v_add_u32 {v(vD)}, {s(col_sreg)}, {v(vD)}")
    A(f"s_lshl_b32 {s(S_RING)}, {s(S_W)}, 15")
    A(f"v_xor_b32 {v(t+7)}, {s(S_W)}, {v(t+5)}")
    bits(A, vT, [(t+2, 1, 1, 32768), (t+2, 0, 1, 2048), (t+5, 0, 2, 256), (t+7, 0, 2, 64), (t+4, 0, 2, 8)], t+6)
    A(f"v_add_u32 {v(vT+1)}, 65536, {v(vT)}")
    bits(A, P_XR, [(t+1, 0, 4, XRS), (t+2, 0, 2, 16)], t+6)
    bits(A, P_KS, [(t+1, 2, 1, 4096), (t+2, 0, 2, 256), (t+1, 3, 1, 64), (t+1, 0, 2, 16)], t+6)
    A(f"v_mov_b32 {v(P_Z)}, 0")
    seq = []
    for m in (1, 2, 0):
        for kk in range(8):
            seq.append(dict(srd=srds[m], vd=vD, so=(lambda i, kk=kk, m=m: (64*kk + 4*i) * rowstride + colbase[m]),
                            rd=(lambda x, part, u: (vT + part, 1024*u + 32*x)), dst=P_W + 16 * (8*m + kk)))
    coop_loader(A, seq)

def x_dma(A):
    for i in range(8):
        A(f"s_add_u32 m0, {s(S_XL)}, {i * XRS}")
        A(f"s_add_u32 {s(S_T)}, {s(S_XO)}, {i * 1024}")
        A(f"buffer_load_dwordx4 v0, {s(S_SX,4)}, {s(S_T)} offen lds")

def proj_loop(A, xstep, nst, epilogue, midhook):
    A(f"s_mul_i32 {s(S_XL)}, {s(S_W)}, {8 * XRS}")
    A(f"s_mov_b32 {s(S_XD)}, {XBUF}")
    A(f"s_mov_b32 {s(S_CNTU)}, 0")
    x_dma(A)
    A("s_waitcnt vmcnt(0)")
    L = A.newlabel("proj")
    A.label(L)
    A(f"s_waitcnt vmcnt({nst})")
    A("s_barrier")
    rd = lambda ks: [f"ds_read_b128 {v(P_XF + 8*(ks&1) + 4*rt, 4)}, {v(P_XR)} offset:{rt*16*XRS + ks*64}" for rt in range(2)]
    A("\n".join(rd(0)))
    A(f"s_add_u32 {s(S_XO)}, {s(S_XO)}, {xstep}")
    A(f"s_add_u32 {s(S_XL)}, {s(S_XL)}, {s(S_XD)}")
    x_dma(A)
    for ks in range(16):
        if ks < 15:
            A("\n".join(rd(ks + 1))); A("s_waitcnt lgkmcnt(2)")
        else:
            A("s_waitcnt lgkmcnt(0)")
        for m in (1, 2, 0):
            for rt in range(2):
                for t in range(2):
                    xf = P_XF + 8*(ks&1) + 4*rt
                    a_, b_ = (xf, wf(m, ks, t)) if m == 2 else (wf(m, ks, t), xf)
                    A(MF(acc(m, rt, t), a_, b_, acc(m, rt, t) if ks else None))
        if ks == 5 and midhook: midhook()
    A(f"v_add_u32 {v(P_XR)}, {s(S_XD)}, {v(P_XR)}")
    A(f"s_sub_u32 {s(S_XD)}, 0, {s(S_XD)}")
    epilogue()
    A(f"s_add_u32 {s(S_CNTU)}, {s(S_CNTU)}, 1")
    A(f"s_cmp_lt_u32 {s(S_CNTU)}, {s(S_N)}")
    A(f"s_cbranch_scc1 {L}")

def post_flag(A, sval):
    Ls = A.newlabel("nofl")
    A(f"s_cmp_eq_u32 {s(S_W)}, 0")
    A(f"s_cbranch_scc0 {Ls}")
    A(f"v_mov_b32 {v(P_T)}, {sval}")
    A("s_mov_b64 exec, 1")
    A(f"global_store_dword {v(P_Z)}, {v(P_T)}, {s(S_FL,2)} sc1")
    A("s_mov_b64 exec, -1")
    A.label(Ls)

def role_qkv(A):
    A(f"s_load_dwordx4 s[80:83], s[0:1], {KA['B_Wq']}")
    A(f"s_load_dwordx2 s[84:85], s[0:1], {KA['B_Wv']}")
    A(f"s_load_dwordx2 s[86:87], s[0:1], {KA['B_x']}")
    A(f"s_mul_i32 s70, {s(S_H)}, 43691")
    A("s_lshr_b32 s70, s70, 17")
    A("s_mul_i32 s71, s70, 3")
    A(f"s_sub_u32 s71, {s(S_H)}, s71")
    A("s_waitcnt lgkmcnt(0)")
    srd(A, S_S1, 80, 4 << 20); srd(A, S_S2, 82, 4 << 20); srd(A, S_S3, 84, 4 << 20); srd(A, S_SX, 86, 2 << 20)
    A("s_lshl_b32 s72, s70, 8")
    proj_setup(A, [S_S1, S_S2, S_S3], 8192, 72, [0, 0, 0])
    A(";mark 100")
    wait_arrived(A, P_T, P_Z)
    A("s_cmp_eq_u32 s71, 0")
    A(f"s_cselect_b32 {s(S_N)}, 22, 21")
    A(f"s_lshl_b32 {s(S_XO)}, s71, 15")
    A(f"s_lshl_b32 s73, {s(S_W)}, 13")
    A(f"s_add_u32 {s(S_XO)}, {s(S_XO)}, s73")
    A("s_lshl_b32 s72, s70, 6")
    A("s_add_u32 s72, s72, s71")
    A(f"s_lshl_b32 s74, {s(S_W)}, 10")
    A("s_lshl_b32 s73, s72, 13"); A("s_add_u32 s73, s73, s74"); wsptr(A, S_P0, 73, WS_Q + 2048)
    A("s_lshl_b32 s73, s72, 14"); A("s_add_u32 s73, s73, s74"); wsptr(A, S_P1, 73, WS_KV)
    A("s_lshl_b32 s73, s72, 14"); A("s_add_u32 s73, s73, s74"); A("s_add_u32 s73, s73, s74"); wsptr(A, S_P2, 73, WS_KV + 8192)
    A("s_add_u32 s73, s72, s70"); A("s_lshl_b32 s73, s73, 12"); A("s_add_u32 s73, s73, s74"); wsptr(A, S_P3, 73, WS_KM + 4096)
    A(f"v_mov_b64 {v(P_E+24,2)}, -1"); A(f"v_mov_b64 {v(P_E+26,2)}, -1")
    A("s_lshl_b32 s73, s70, 7"); A("s_lshl_b32 s74, s71, 2"); A("s_add_u32 s73, s73, s74"); wsptr(A, S_FL, 73, F_Q)
    def epi():
        for m, base in ((1, P_E), (2, P_E + 8), (0, P_E + 16)):
            for x in range(2):
                for j in range(4):
                    if m == 2: a0 = acc(2, j >> 1, x) + 2 * (j & 1); A(cvt(base + 4*x + j, a0, a0 + 1))
                    else: A(cvt(base + 4*x + j, acc(m, x, 0) + j, acc(m, x, 1) + j))
            for x in range(2):
                if m == 1: A(f"global_store_dwordx4 {v(P_KS)}, {v(base + 4*x, 4)}, {s(S_P1,2)} offset:{128*x} sc1")
                if m == 2: A(f"global_store_dwordx4 v0, {v(base + 4*x, 4)}, {s(S_P2,2)} offset:{1024*x} sc1")
                if m == 0: A(f"global_store_dwordx4 v0, {v(base + 4*x, 4)}, {s(S_P0,2)} offset:{4096*x - 2048} sc1")
        A(f"global_store_dwordx4 v0, {v(P_E+24, 4)}, {s(S_P3,2)} sc1")
        A(adv(S_P0, 3 * 8192)); A(adv(S_P1, 3 * 16384)); A(adv(S_P2, 3 * 16384)); A(adv(S_P3, 3 * 4096))
    def mid():
        A("s_waitcnt vmcnt(8)")
        A("s_barrier")
        post_flag(A, s(S_CNTU))
    proj_loop(A, 3 * 32768, 7, epi, mid)
    A("s_waitcnt vmcnt(0)")
    A("s_barrier")
    post_flag(A, 1000)
    A("s_endpgm")

def xmax(A, op, x, y):
    A(f"v_mov_b32 {v(y)}, {v(x)}"); A("s_nop 1")
    A(f"v_permlane32_swap_b32 {v(x)}, {v(y)}")
    A(f"{op} {v(x)}, {v(x)}, {v(y)}")
    A(f"v_mov_b32 {v(y)}, {v(x)}"); A("s_nop 1")
    A(f"v_permlane16_swap_b32 {v(x)}, {v(y)}")
    A(f"{op} {v(x)}, {v(x)}, {v(y)}")

def role_att(A):
    vKS, vZ, vKM, vL4, vOS, vT = 1, 2, 3, 4, 5, 6
    ONE = 12
    Q, K, Vf, KMf, VM, T, P, O, SU = 16, 32, 64, 96, 112, 128, 140, 148, 180
    sQ, sK, sV, sV2, sKM, sO, sFQ, sFC, sFO = 8, 10, 12, 14, 16, 18, 20, 22, 24
    sS, sSet, sCnt, sMask, sC, sNeg = 34, 35, 36, 70, 38, 40
    t = 200
    lane_consts(A, t)
    bits(A, vKS, [(t+1, 2, 1, 4096), (t+2, 0, 2, 256), (t+1, 3, 1, 64), (t+1, 0, 2, 16)], t+6)
    bits(A, vKM, [(t+2, 0, 2, 256), (t+1, 2, 1, 128), (t+1, 3, 1, 64), (t+1, 0, 2, 16)], t+6)
    vIDX = 11
    A(f"v_mov_b32 {v(t+6)}, 0x4444"); A(f"v_mov_b32 {v(t+7)}, 0xeeee")
    A("s_mov_b32 vcc_lo, 0xcccccccc"); A("s_mov_b32 vcc_hi, 0xcccccccc")
    A(f"v_cndmask_b32 {v(vIDX)}, {v(t+6)}, {v(t+7)}, vcc")
    bits(A, vOS, [(t+1, 3, 1, 65536), (t+2, 0, 2, 256), (t+1, 0, 3, 16)], t+6)
    A(f"v_lshlrev_b32 {v(vL4)}, 2, {v(t)}")
    A(f"v_mov_b32 {v(vZ)}, 0")
    for i in range(4): A(f"v_mov_b32 {v(ONE+i)}, 0x3f803f80")
    for i in range(8): A(f"v_mov_b32 {v(VM + 2*i + 1)}, 0")
    A(f"v_mov_b32 {v(P+5)}, 0")
    A(f"s_and_b32 s90, {s(S_H)}, 15"); A("s_lshl_b32 s90, s90, 1"); A(f"s_lshr_b32 s91, {s(S_W)}, 1"); A("s_add_u32 s90, s90, s91")
    A(f"s_and_b32 s91, {s(S_W)}, 1")
    A(f"s_lshr_b32 {s(sS)}, {s(S_H)}, 4")
    A(f"s_mov_b32 {s(sSet)}, {s(sS)}"); A(f"s_mov_b32 {s(sCnt)}, 0")
    A("s_lshl_b32 s92, s91, 4")
    A(f"v_add_u32 {v(t+6)}, s92, {v(t+1)}")
    A(f"v_lshlrev_b32 {v(t+7)}, 2, {v(t+2)}")
    A(f"v_sub_u32 {v(t+6)}, {v(t+6)}, {v(t+7)}")
    for i in range(8): A(f"v_cmp_le_i32 {s(sMask + 2*i, 2)}, {16*(i>>2) + (i&3)}, {v(t+6)}")
    c = (128 ** -0.5) * math.log2(math.e)
    A(f"s_mov_b32 {s(sC)}, {f2u(c):#x}"); A(f"s_mov_b32 {s(sC+1)}, {f2u(-c):#x}")
    A(f"v_mov_b32 {v(vT+4)}, {f2u(-1e9 * math.sqrt(128)):#x}")
    A("s_lshl_b32 s92, s90, 6"); A(f"s_add_u32 s92, s92, {s(sS)}")
    A("s_lshl_b32 s93, s92, 13"); A("s_lshl_b32 s94, s91, 12"); A("s_add_u32 s93, s93, s94"); wsptr(A, sQ, 93, WS_Q)
    A("s_lshl_b32 s93, s92, 14"); wsptr(A, sK, 93, WS_KV)
    A("s_lshl_b32 s93, s92, 14"); wsptr(A, sV, 93, WS_KV + 8192 + 4096)
    A("s_add_u32 s93, s92, s90"); A("s_lshl_b32 s93, s93, 12"); wsptr(A, sKM, 93, WS_KM + 4096)
    A(f"s_lshl_b32 s93, {s(sS)}, 18"); A("s_lshl_b32 s94, s91, 17"); A("s_add_u32 s93, s93, s94")
    A("s_lshl_b32 s94, s90, 11"); A("s_add_u32 s93, s93, s94"); wsptr(A, sO, 93, WS_O)
    A("s_lshl_b32 s93, s90, 7"); wsptr(A, sFQ, 93, F_Q)
    A(f"s_lshl_b32 s93, {s(sS)}, 8"); A("s_lshl_b32 s94, s91, 7"); A("s_add_u32 s93, s93, s94")
    A("s_lshl_b32 s94, s90, 2"); A("s_add_u32 s93, s93, s94"); wsptr(A, sFO, 93, F_O)
    wait_arrived(A, vT, vZ)
    L = A.newlabel("att")
    A.label(L)
    A(f"s_lshl_b32 {s(S_T)}, {s(sSet)}, 2")
    A(f"v_mov_b32 {v(vT+1)}, {s(S_T)}")
    spin(A, f"global_load_dword {v(vT)}, {v(vT+1)}, {s(sFQ,2)} sc1", f"v_cmp_ge_u32 vcc, {s(sCnt)}, {v(vT)}", 4)
    for ks in range(4): A(f"global_load_dwordx4 {v(Q + 4*ks, 4)}, v0, {s(sQ,2)} offset:{1024*ks} sc1")
    for kt in range(2):
        for ks in range(4): A(f"global_load_dwordx4 {v(K + 16*kt + 4*ks, 4)}, {v(vKS)}, {s(sK,2)} offset:{1024*ks + 128*kt} sc1")
    for et in range(8): A(f"global_load_dwordx4 {v(Vf + 4*et, 4)}, v0, {s(sV,2)} offset:{1024*et - 4096} sc1")
    A("s_waitcnt vmcnt(8)")
    for kt in range(2):
        for ks in range(4): A(MF(T + 4*kt, K + 16*kt + 4*ks, Q + 4*ks, T + 4*kt if ks else None))
    A(f"v_mov_b64 {v(T+8,2)}, 0"); A(f"v_mov_b64 {v(T+10,2)}, 0")
    A("s_nop 3")
    for i in range(8): A(f"v_cndmask_b32 {v(T+i)}, {v(vT+4)}, {v(T+i)}, {s(sMask + 2*i, 2)}")
    mx = vT + 2
    A(f"v_max3_f32 {v(mx)}, {v(T)}, {v(T+1)}, {v(T+2)}")
    A(f"v_max3_f32 {v(mx)}, {v(mx)}, {v(T+3)}, {v(T+4)}")
    A(f"v_max3_f32 {v(mx)}, {v(mx)}, {v(T+5)}, {v(T+6)}")
    A(f"v_max_f32 {v(mx)}, {v(mx)}, {v(T+7)}")
    lds_ = [f"global_load_dwordx4 {v(KMf + 4*kk, 4)}, {v(vKM)}, {s(sKM,2)} offset:{1024*kk} sc1" for kk in range(2)] + \
           [f"global_load_dword {v(VM + 2*et)}, {v(vL4)}, {s(sKM,2)} offset:{2048 + 256*et} sc1" for et in range(8)]
    al = [KMf + i for i in range(8)] + [VM + 2*i for i in range(8)]
    ck = [f"v_maximum3_f32 {v(vT)}, {v(al[0])}, {v(al[1])}, {v(al[2])}"] + \
         [f"v_maximum3_f32 {v(vT)}, {v(vT)}, {v(al[i])}, {v(al[i+1])}" for i in range(3, 15, 2)] + [f"v_cmp_u_f32 vcc, {v(vT)}, {v(al[15])}"]
    spin(A, "\n".join(lds_), "\n".join(ck), 1)
    for kk in range(2):
        A(f"v_smfmac_f32_16x16x64_bf16 {v(T+8,4)}, {v(KMf + 4*kk, 4)}, {v(Q + 8*kk, 8)}, {v(vIDX)}")
    A("s_nop 7")
    A(f"v_pk_add_f32 {v(T+8,2)}, {v(T+8,2)}, {v(T+10,2)}")
    A(f"v_max3_f32 {v(mx)}, {v(mx)}, {v(T+8)}, {v(T+9)}")
    xmax(A, "v_max_f32", mx, mx + 1)
    A(f"v_mul_f32 {v(mx)}, {s(sC+1)}, {v(mx)}")
    for i in range(10): A(f"v_fma_f32 {v(T+i)}, {v(T+i)}, {s(sC)}, {v(mx)}")
    for i in range(10): A(f"v_exp_f32 {v(T+i)}, {v(T+i)}")
    for i in range(5): A(cvt(P + i, T + 2*i, T + 2*i + 1))
    A("s_waitcnt vmcnt(0)")
    A("s_nop 0")
    A(MF(SU, ONE, P))
    for et in range(8): A(MF(O + 4*et, Vf + 4*et, P))
    A(MF16(SU, ONE, P + 4, SU))
    for et in range(8): A(MF16(O + 4*et, VM + 2*et, P + 4, O + 4*et))
    A(f"v_rcp_f32 {v(SU)}, {v(SU)}")
    A("s_nop 0")
    for ks in range(4):
        if ks == 3: A("s_nop 1")
        for j in range(4):
            a0 = O + 8*ks + 2*j
            A(f"v_mul_f32 {v(a0)}, {v(a0)}, {v(SU)}"); A(f"v_mul_f32 {v(a0+1)}, {v(a0+1)}, {v(SU)}")
            A(cvt(K + 4*ks + j, a0, a0 + 1))
        A(f"global_store_dwordx4 {v(vOS)}, {v(K + 4*ks, 4)}, {s(sO,2)} offset:{1024*(ks>>1) + 128*(ks&1)} sc1")
    A(f"v_mov_b32 {v(vT)}, 1")
    A("s_waitcnt vmcnt(0)")
    A("s_mov_b64 exec, 1")
    A(f"global_store_dword {v(vZ)}, {v(vT)}, {s(sFO,2)} sc1")
    A("s_mov_b64 exec, -1")
    A(adv(sQ, 2*8192)); A(adv(sK, 2*16384)); A(adv(sV, 2*16384)); A(adv(sKM, 2*4096)); A(adv(sO, 2 << 18)); A(adv(sFO, 512))
    A(f"s_add_u32 {s(sSet)}, {s(sSet)}, 2")
    A(f"s_cmp_ge_u32 {s(sSet)}, 3")
    A(f"s_cselect_b32 {s(S_T)}, 3, 0")
    A(f"s_addc_u32 {s(sCnt)}, {s(sCnt)}, 0")
    A(f"s_sub_u32 {s(sSet)}, {s(sSet)}, {s(S_T)}")
    A(f"s_add_u32 {s(sS)}, {s(sS)}, 2")
    A(f"s_cmp_lt_u32 {s(sS)}, 64")
    A(f"s_cbranch_scc1 {L}")
    A("s_endpgm")

def role_b4(A, cfg):
    vIDX, vZ, vF, vLW, vLR, vOUT, vT = 1, 2, 3, 4, 5, 6, 8
    AC, OF, RD = 16, 32, 96
    W = 256
    sWo, sO, sO2, sFO, sOut, sS, sD = 8, 12, 14, 16, 18, 34, 35
    RS, PS = 36, 8 * 36
    BUFB = 8 * PS * 4
    A(f"s_load_dwordx2 s[80:81], s[0:1], {KA['B_Wo']}")
    A(f"s_load_dwordx2 s[82:83], s[0:1], {KA['out']}")
    t = 32
    lane_consts(A, t)
    A(f"s_lshr_b32 s90, {s(S_H)}, 4"); A(f"s_and_b32 s91, {s(S_H)}, 15")
    vD, vTr = vT, vT + 1
    bits(A, vD, [(t+3, 0, 4, 1024), (t+4, 0, 2, 16)], t+6)
    A(f"s_lshl_b32 s92, {s(S_W)}, 20"); A("s_lshl_b32 s93, s91, 6"); A("s_add_u32 s92, s92, s93")
    A(f"v_add_u32 {v(vD)}, s92, {v(vD)}")
    A(f"s_lshl_b32 {s(S_RING)}, {s(S_W)}, 15")
    bits(A, vTr, [(t+5, 1, 1, 32*64), (t+2, 0, 1, 16*64), (t+2, 1, 1, 4*64), (t+5, 0, 1, 64), (t+4, 0, 2, 8)], t+6)
    A(f"v_add_u32 {v(vTr)}, {s(S_RING)}, {v(vTr)}")
    A(f"v_mov_b32 {v(t+6)}, 0x4444"); A(f"v_mov_b32 {v(t+7)}, 0xeeee")
    A(f"v_cmp_lt_u32 vcc, 7, {v(t+1)}"); A("s_nop 1")
    A(f"v_cndmask_b32 {v(vIDX)}, {v(t+6)}, {v(t+7)}, vcc")
    A(f"v_mov_b32 {v(vZ)}, 0")
    bits(A, vF, [(t, 0, 3, 4)], t+6)
    bits(A, vLW, [(t+2, 1, 1, PS*4), (t+2, 0, 1, 4*RS*4), (t+1, 0, 4, 4)], t+6)
    A(f"s_mul_i32 s92, {s(S_W)}, {2*PS*4}"); A(f"v_add_u32 {v(vLW)}, s92, {v(vLW)}")
    bits(A, vLR, [(t+2, 0, 2, RS*4), (t+1, 0, 4, 8)], t+6)
    A(f"s_and_b32 s92, {s(S_W)}, 1"); A(f"s_mul_i32 s93, s92, {4*RS*4}"); A(f"v_add_u32 {v(vLR)}, s93, {v(vLR)}")
    bits(A, vOUT, [(t+2, 0, 2, 2048), (t+1, 0, 4, 4)], t+6)
    A("s_waitcnt lgkmcnt(0)")
    srd(A, sWo, 80, 4 << 20)
    A("s_lshl_b32 s93, s90, 14"); A("s_lshl_b32 s92, s92, 13"); A("s_add_u32 s93, s93, s92")
    A("s_lshl_b32 s92, s91, 6"); A("s_add_u32 s93, s93, s92"); A("s_add_u32 s93, s93, 1024")
    A(f"s_add_u32 {s(sOut)}, s82, s93"); A(f"s_addc_u32 {s(sOut+1)}, s83, 0")
    A("s_lshl_b32 s93, s90, 16"); A(f"s_lshl_b32 s92, {s(S_W)}, 14"); A("s_add_u32 s93, s93, s92"); wsptr(A, sO, 93, WS_O + 4096)
    A(f"s_add_u32 {s(sO2)}, {s(sO)}, 8192"); A(f"s_addc_u32 {s(sO2+1)}, {s(sO+1)}, 0")
    A("s_lshr_b32 s93, s90, 1"); A("s_lshl_b32 s93, s93, 7"); A(f"s_lshl_b32 s92, {s(S_W)}, 5"); A("s_add_u32 s93, s93, s92"); wsptr(A, sFO, 93, F_O)
    seq = [dict(srd=sWo, vd=vD, so=(lambda i, n=n: (64*n + 16*i) * 1024), vt=vTr,
                off=(lambda x, part, u: (8*part + 2*u) * 64 + x * 32), dst=W + 16*n) for n in range(16)]
    loader(A, seq)
    A(";mark 100")
    wait_arrived(A, vT, vZ)
    A("s_barrier")
    A(f"s_mov_b32 {s(sS)}, 0"); A(f"s_mov_b32 {s(sD)}, {BUFB}")
    L = A.newlabel("b4")
    A.label(L)
    for i in range(4): A(f"v_mov_b64 {v(AC + 2*i, 2)}, 0")
    spin(A, f"global_load_dword {v(vT)}, {v(vF)}, {s(sFO,2)} sc1", f"v_cmp_eq_u32 vcc, 0, {v(vT)}", 1)
    for n in range(16):
        A(f"global_load_dwordx4 {v(OF + 4*n, 4)}, v0, {s(sO if n < 8 else sO2, 2)} offset:{1024*(n&7) - 4096} sc1")
    for n in range(16):
        A(f"s_waitcnt vmcnt({15 - n})")
        for x in range(2):
            A(f"v_smfmac_f32_16x16x64_bf16 {v(AC + 4*x, 4)}, {v(OF + 4*n, 4)}, {r(W + 16*n + 8*x, 8)}, {v(vIDX)}")
    A(adv(sO, 1 << 18)); A(adv(sO2, 1 << 18)); A(adv(sFO, 256))
    A("s_nop 1")
    for j in range(4): A(f"ds_write2_b32 {v(vLW)}, {v(AC + j)}, {v(AC + 4 + j)} offset0:{j*RS} offset1:{j*RS + 16}")
    A("s_waitcnt lgkmcnt(0)")
    A("s_barrier")
    Ls = A.newlabel("b4s")
    A(f"s_cmp_ge_u32 {s(S_W)}, 2")
    A(f"s_cbranch_scc1 {Ls}")
    for p in range(8): A(f"ds_read_b64 {v(RD + 2*p, 2)}, {v(vLR)} offset:{p*PS*4}")
    for p in range(1, 8):
        A(f"s_waitcnt lgkmcnt({7 - p})")
        A(f"v_pk_add_f32 {v(RD,2)}, {v(RD,2)}, {v(RD + 2*p, 2)}")
    A(cvt(RD, RD, RD + 1))
    A(f"global_store_dword {v(vOUT)}, {v(RD)}, {s(sOut,2)} {cfg['outst']}")
    A.label(Ls)
    A(adv(sOut, 32 * 2048))
    A(f"v_add_u32 {v(vLW)}, {s(sD)}, {v(vLW)}"); A(f"v_add_u32 {v(vLR)}, {s(sD)}, {v(vLR)}")
    A(f"s_sub_u32 {s(sD)}, 0, {s(sD)}")
    A(f"s_add_u32 {s(sS)}, {s(sS)}, 1")
    A(f"s_cmp_lt_u32 {s(sS)}, 64")
    A(f"s_cbranch_scc1 {L}")
    A("s_endpgm")

def role_a(A, cfg):
    WPH, IDN, ONE = 6, 10, 12
    KV = 96
    E = 80
    sWo, sOut, sL2e = 12, 24, 52
    A(f"s_load_dwordx8 s[80:87], s[0:1], {KA['A_x']}")
    A(f"s_load_dwordx2 s[88:89], s[0:1], {KA['out']}")
    A(f"s_lshr_b32 s70, {s(S_H)}, 2"); A(f"s_and_b32 s71, {s(S_H)}, 3")
    A("s_lshl_b32 s74, s71, 2"); A(f"s_add_u32 s74, s74, {s(S_W)}")
    A("s_waitcnt lgkmcnt(0)")
    srd(A, S_SX, 80, 2 << 20); srd(A, S_S2, 82, 512 * 3072); srd(A, S_S3, 84, 16384); srd(A, sWo, 86, 512 * 1024)
    t = P_ACC
    lane_consts(A, t)
    bits(A, E, [(t+2, 0, 2, 128), (t+1, 0, 4, 2)], t+6)
    A("s_lshl_b32 s72, s74, 10")
    for hd in range(2):
        for jj in range(4):
            A(f"buffer_load_ushort {v(E + 2 + 4*hd + jj)}, {v(E)}, {s(S_S3,4)}, s72 offen offset:{512*hd + 32*jj}")
    A(f"v_lshlrev_b32 {v(t+6)}, 2, {v(t+2)}")
    A(f"v_sub_u32 {v(t+6)}, {v(t+1)}, {v(t+6)}")
    A(f"v_mov_b32 {v(t+7)}, 0x3f80"); A(f"v_mov_b32 {v(t+8)}, 0x3f800000")
    for d in range(2):
        A(f"v_cmp_eq_u32 vcc, {2*d}, {v(t+6)}"); A("s_nop 1")
        A(f"v_cndmask_b32 {v(IDN+d)}, 0, {v(t+7)}, vcc")
        A(f"v_cmp_eq_u32 vcc, {2*d+1}, {v(t+6)}"); A("s_nop 1")
        A(f"v_cndmask_b32 {v(IDN+d)}, {v(IDN+d)}, {v(t+8)}, vcc")
    for i in range(4): A(f"v_mov_b32 {v(ONE+i)}, 0x3f803f80")
    for i in range(16): A(f"v_mov_b64 {v(KV + 2*i, 2)}, 0")
    A("s_waitcnt vmcnt(0)")
    for i in range(4): A(f"v_lshl_or_b32 {v(WPH+i)}, {v(E + 3 + 2*i)}, 16, {v(E + 2 + 2*i)}")
    A("s_lshl_b32 s72, s71, 8")
    proj_setup(A, [S_S2, S_S2, S_S2], 3072, 72, [0, 1024, 2048])
    wait_arrived(A, P_T, P_Z)
    A(f"s_mov_b32 {s(S_N)}, 8")
    A(f"s_lshl_b32 {s(S_XO)}, s70, 18"); A(f"s_lshl_b32 s73, {s(S_W)}, 13"); A(f"s_add_u32 {s(S_XO)}, {s(S_XO)}, s73")
    A(f"s_lshl_b32 s73, {s(S_H)}, 17"); A(f"s_lshl_b32 s72, {s(S_W)}, 15"); A("s_add_u32 s73, s73, s72"); wsptr(A, S_P0, 73, WS_APHI)
    l2e = math.log2(math.e)
    A(f"s_mov_b32 {s(sL2e)}, {f2u(l2e):#x}"); A(f"s_mov_b32 {s(sL2e+1)}, {f2u(-l2e):#x}")
    def softmax2(x, out):
        p, n_, mx, mn, y = E, E + 4, E + 8, E + 9, E + 10
        A(f"v_max3_f32 {v(mx)}, {v(x)}, {v(x+1)}, {v(x+2)}"); A(f"v_min3_f32 {v(mn)}, {v(x)}, {v(x+1)}, {v(x+2)}")
        A(f"v_max_f32 {v(mx)}, {v(mx)}, {v(x+3)}"); A(f"v_min_f32 {v(mn)}, {v(mn)}, {v(x+3)}")
        def both(o1, o2):
            for pl in ("v_permlane32_swap_b32", "v_permlane16_swap_b32"):
                A(f"v_mov_b64 {v(y,2)}, {v(mx,2)}"); A("s_nop 1")
                A(f"{pl} {v(mx)}, {v(y)}"); A(f"{pl} {v(mn)}, {v(y+1)}")
                A(f"{o1} {v(mx)}, {v(mx)}, {v(y)}"); A(f"{o2} {v(mn)}, {v(mn)}, {v(y+1)}")
        both("v_max_f32", "v_min_f32")
        A(f"v_mul_f32 {v(mx)}, {s(sL2e+1)}, {v(mx)}"); A(f"v_mul_f32 {v(mn)}, {s(sL2e)}, {v(mn)}")
        for i in range(4):
            A(f"v_fma_f32 {v(p+i)}, {v(x+i)}, {s(sL2e)}, {v(mx)}"); A(f"v_fma_f32 {v(n_+i)}, {v(x+i)}, {s(sL2e+1)}, {v(mn)}")
        for i in range(8): A(f"v_exp_f32 {v(p+i)}, {v(p+i)}")
        A(f"v_add_f32 {v(mx)}, {v(p)}, {v(p+1)}"); A(f"v_add_f32 {v(mn)}, {v(n_)}, {v(n_+1)}")
        for i in (2, 3):
            A(f"v_add_f32 {v(mx)}, {v(mx)}, {v(p+i)}"); A(f"v_add_f32 {v(mn)}, {v(mn)}, {v(n_+i)}")
        both("v_add_f32", "v_add_f32")
        A(f"v_rcp_f32 {v(mx)}, {v(mx)}"); A(f"v_rcp_f32 {v(mn)}, {v(mn)}")
        for i in range(4): A(f"v_mul_f32 {v(p+i)}, {v(p+i)}, {v(mx)}")
        for i in range(4): A(f"v_mul_f32 {v(n_+i)}, {v(n_+i)}, {v(mn)}")
        for i in range(4): A(cvt(out + i, p + 2*i, p + 2*i + 1))
    def epi():
        X = P_XF
        for m in (1, 0):
            for rt in range(2):
                for hd in range(2):
                    a0 = acc(m, rt, hd); xr = X + 8*(1 - m) + 4*rt + 2*hd
                    A(cvt(xr, a0, a0 + 1)); A(cvt(xr + 1, a0 + 2, a0 + 3))
        A("s_nop 0")
        for m in (1, 0):
            for rt in range(2):
                for hd in range(2):
                    A(MF16(acc(m, rt, hd), WPH + 2*hd, X + 8*(1 - m) + 4*rt + 2*hd))
        for rt in range(2):
            for hd in range(2): softmax2(acc(1, rt, hd), acc(1, rt, hd))
        for hd in range(2):
            for jx in range(4):
                a0 = acc(2, jx >> 1, hd) + 2 * (jx & 1); A(cvt(X + 4*hd + jx, a0, a0 + 1))
        for hd in range(2):
            A("s_nop 0")
            for sg in range(2):
                for rt in range(2): A(MF16(acc(2, sg, rt), acc(1, rt, hd) + 2*sg, IDN))
            softmax2(acc(0, 0, hd), acc(0, 0, hd))
            for sg in range(2):
                for jx in range(4):
                    a0 = acc(2, sg, jx >> 1) + 2 * (jx & 1); A(cvt(X + 8 + 4*sg + jx, a0, a0 + 1))
            A("s_nop 1")
            for sg in range(2):
                A(MF(KV + 16*hd + 4*sg, X + 8 + 4*sg, X + 4*hd, KV + 16*hd + 4*sg))
                A(MF(KV + 16*hd + 8 + 4*sg, X + 8 + 4*sg, ONE, KV + 16*hd + 8 + 4*sg))
            softmax2(acc(0, 1, hd), acc(0, 1, hd))
        for rt in range(2):
            for hd in range(2):
                A(f"global_store_dwordx4 v0, {v(acc(0, rt, hd), 4)}, {s(S_P0,2)} offset:{2048*rt + 1024*hd} sc1")
        A(adv(S_P0, 4096))
    proj_loop(A, 32768, 4, epi, None)
    A(";mark 100")
    A("s_lshl_b32 s73, s74, 16"); A("s_lshl_b32 s72, s70, 13"); A("s_add_u32 s73, s73, s72"); wsptr(A, S_P1, 73, WS_AKV + 4096)
    for i in range(8): A(f"global_store_dwordx4 v0, {v(KV + 4*i, 4)}, {s(S_P1,2)} offset:{1024*i - 4096} sc1")
    A("s_lshl_b32 s73, s71, 7"); A("s_lshl_b32 s72, s70, 2"); A("s_add_u32 s73, s73, s72"); wsptr(A, S_FL, 73, F_A1)
    A("s_waitcnt vmcnt(0)")
    A("s_barrier")
    post_flag(A, 1)
    lane_consts(A, t)
    vD, vT, vF, vOUT = E, E + 1, E + 2, E + 3
    bits(A, vD, [(t+3, 0, 4, 1024), (t+4, 0, 2, 16)], t+6)
    A("s_lshl_b32 s72, s74, 6"); A(f"v_add_u32 {v(vD)}, s72, {v(vD)}")
    bits(A, vT, [(t+2, 0, 2, 256), (t+5, 0, 2, 64), (t+4, 0, 2, 16)], t+6)
    A(f"v_add_u32 {v(vT)}, {s(S_RING)}, {v(vT)}")
    bits(A, vF, [(t, 0, 3, 4)], t+6)
    bits(A, vOUT, [(t+1, 0, 4, 2048), (t+2, 0, 2, 16)], t+6)
    WO = 256
    seq = [dict(srd=sWo, vd=vD, so=(lambda i, n=n: (64*n + 16*i) * 1024), vt=vT,
                off=(lambda x, part, u: (32*part + 16*u) * 64 + x * 8), dst=WO + 16*n) for n in range(8)]
    loader(A, seq)
    A("s_lshl_b32 s73, s71, 7"); wsptr(A, S_FL, 73, F_A1)
    spin(A, f"global_load_dword {v(P_T)}, {v(vF)}, {s(S_FL,2)} sc1", f"v_cmp_eq_u32 vcc, 0, {v(P_T)}", 4)
    A("s_lshl_b32 s73, s74, 16"); wsptr(A, S_P1, 73, WS_AKV + 4096)
    B0 = 128
    for half in range(2):
        for g_ in range(4):
            dst = KV if (half == 0 and g_ == 0) else B0 + 32*g_
            for i in range(8): A(f"global_load_dwordx4 {v(dst + 4*i, 4)}, v0, {s(S_P1,2)} offset:{1024*i - 4096} sc1")
            A(adv(S_P1, 8192))
        A("s_waitcnt vmcnt(0)")
        for g_ in range(4):
            if half == 0 and g_ == 0: continue
            for i in range(16): A(f"v_pk_add_f32 {v(KV + 2*i, 2)}, {v(KV + 2*i, 2)}, {v(B0 + 32*g_ + 2*i, 2)}")
    KB = 16
    for hd in range(2):
        for z in range(2):
            for jx in range(4):
                a0 = KV + 16*hd + 8*z + 2*jx; A(cvt(KB + 8*hd + 4*z + jx, a0, a0 + 1))
    A(f"s_lshl_b32 s73, {s(S_H)}, 17"); A(f"s_lshl_b32 s72, {s(S_W)}, 15"); A("s_add_u32 s73, s73, s72"); wsptr(A, S_P0, 73, WS_APHI + 4096)
    for i in range(32):
        A(f"global_load_dwordx4 {v(B0 + 4*i, 4)}, v0, {s(S_P0,2)} offset:{1024*(i&7) - 4096} sc1")
        if i & 7 == 7: A(adv(S_P0, 8192))
    A("s_lshl_b32 s73, s70, 18"); A("s_lshl_b32 s72, s74, 10"); A("s_add_u32 s73, s73, s72"); wsptr(A, S_P1, 73, WS_AO)
    A(f"s_mov_b32 {s(sL2e)}, {f2u(1e-6):#x}")
    A("s_waitcnt vmcnt(0)")
    N = 32
    for tl in range(16):
        nb = N + 20 * (tl & 1)
        for hd in range(2):
            A(MF(nb + 8 + 4*hd, KB + 8*hd + 4, B0 + 8*tl + 4*hd))
        for hd in range(2):
            A(MF(nb + 4*hd, KB + 8*hd, B0 + 8*tl + 4*hd))
        for hd in range(2): A(f"v_add_f32 {v(nb + 8 + 4*hd)}, {s(sL2e)}, {v(nb + 8 + 4*hd)}")
        for hd in range(2): A(f"v_rcp_f32 {v(nb + 8 + 4*hd)}, {v(nb + 8 + 4*hd)}")
        for hd in range(2):
            for i in range(4): A(f"v_mul_f32 {v(nb + 4*hd + i)}, {v(nb + 4*hd + i)}, {v(nb + 8 + 4*hd)}")
        for jx in range(4): A(cvt(nb + 16 + jx, nb + 2*jx, nb + 2*jx + 1))
        A(f"global_store_dwordx4 v0, {v(nb + 16, 4)}, {s(S_P1,2)} sc1")
        A(adv(S_P1, 16384))
    A("s_lshl_b32 s73, s70, 7"); A("s_lshl_b32 s72, s71, 2"); A("s_add_u32 s73, s73, s72"); wsptr(A, S_FL, 73, F_A2)
    A("s_waitcnt vmcnt(0)")
    A("s_barrier")
    post_flag(A, 1)
    A("s_lshl_b32 s73, s70, 7"); wsptr(A, S_FL, 73, F_A2)
    A(f"v_and_b32 {v(vF)}, 12, {v(vF)}")
    spin(A, f"global_load_dword {v(P_T)}, {v(vF)}, {s(S_FL,2)} sc1", f"v_cmp_eq_u32 vcc, 0, {v(P_T)}", 4)
    A("s_lshl_b32 s73, s70, 18"); wsptr(A, S_P0, 73, WS_AO + 4096)
    A("s_lshl_b32 s73, s70, 19"); A("s_lshl_b32 s72, s74, 6"); A("s_add_u32 s73, s73, s72")
    A(f"s_add_u32 {s(sOut)}, s88, s73"); A(f"s_addc_u32 {s(sOut+1)}, s89, 0")
    def ld(buf):
        for i in range(16):
            A(f"global_load_dwordx4 {v(B0 + 64*buf + 4*i, 4)}, v0, {s(S_P0,2)} offset:{1024*(i&7) - 4096} sc1")
            if i & 7 == 7: A(adv(S_P0, 8192))
    ld(0)
    A(f"s_mov_b32 {s(S_CNTU)}, 0")
    L = A.newlabel("awo")
    A.label(L)
    for buf in range(2):
        ld(1 - buf)
        A("s_waitcnt vmcnt(16)")
        for ks in range(16):
            for x in range(2):
                A(MF(N + 4*x, WO + 16*(ks >> 1) + 8*x + 4*(ks & 1), B0 + 64*buf + 4*ks, N + 4*x if ks else None))
        A("s_nop 7")
        for jx in range(4): A(cvt(N + 8 + jx, N + 2*jx, N + 2*jx + 1))
        A(f"global_store_dwordx4 {v(vOUT)}, {v(N + 8, 4)}, {s(sOut,2)}")
        A(adv(sOut, 16 * 2048))
    A(f"s_add_u32 {s(S_CNTU)}, {s(S_CNTU)}, 1")
    A(f"s_cmp_lt_u32 {s(S_CNTU)}, 8")
    A(f"s_cbranch_scc1 {L}")
    if cfg["wb"]:
        A("s_waitcnt vmcnt(0)")
        A("buffer_wbl2 sc1")
        A("s_waitcnt vmcnt(0)")
    A("s_endpgm")
```

```python
import sys
from asmlib import *
from common import *
import chain as C
import bg
from bg import srd, spin, BUD

def arrive(A, vz, vt):
    A(f"v_mov_b32 {v(vt)}, 1")
    A("s_mov_b64 exec, 1")
    A(f"global_atomic_add {v(vz)}, {v(vt)}, {s(S_DBG,2)} offset:{D_ARR}")
    A("s_mov_b64 exec, -1")

def chain_role(A, cfg):
    diag = cfg.get("diag")
    A(f"s_load_dwordx4 s[80:83], s[0:1], {KA['B_Wq']}")
    A(f"s_load_dwordx4 s[84:87], s[0:1], {KA['B_Wv']}")
    A(f"s_load_dwordx2 s[88:89], s[0:1], {KA['B_mem0']}")
    A("s_waitcnt lgkmcnt(0)")
    srd(A, C.S_WQ, 80, 4 << 20); srd(A, C.S_WK, 82, 4 << 20); srd(A, C.S_WV, 84, 4 << 20); srd(A, C.S_WO, 86, 4 << 20)
    srd(A, C.S_AUX, 88, 8192)
    def by_wave(base):
        labs = [A.newlabel(f"{base}{w}") for w in range(4)]
        for w in range(1, 4):
            Ln = A.newlabel("nx")
            A(f"s_cmp_eq_u32 {s(S_W)}, {w}")
            A(f"s_cbranch_scc0 {Ln}")
            A(f"s_branch {labs[w]}")
            A.label(Ln)
        return labs
    t = C.V_VA
    VZ = C.V_VB + 11
    A(f"v_bfe_u32 {v(t+2)}, {v(C.V_L16)}, 4, 4")
    A(f"v_lshlrev_b32 {v(t+2)}, 1, {v(t+2)}")
    A(f"s_and_b32 {s(S_T)}, {s(S_H)}, 3")
    A(f"s_lshl_b32 {s(S_T)}, {s(S_T)}, 11")
    A(f"s_bfe_u32 {s(S_T+1)}, {s(S_H)}, 0x10002")
    A(f"s_lshl_b32 {s(S_T+1)}, {s(S_T+1)}, 10")
    A(f"s_add_u32 {s(S_T)}, {s(S_T)}, {s(S_T+1)}")
    A(f"s_lshr_b32 {s(S_T+1)}, {s(S_H)}, 3")
    A(f"s_lshl_b32 {s(S_T+1)}, {s(S_T+1)}, 6")
    A(f"s_add_u32 {s(S_T)}, {s(S_T)}, {s(S_T+1)}")
    A(f"s_lshl_b32 {s(S_T+1)}, {s(S_W)}, 8")
    A(f"s_add_u32 {s(S_T)}, {s(S_T)}, {s(S_T+1)}")
    A(f"buffer_load_ushort {v(t+3)}, {v(t+2)}, {s(C.S_AUX,4)}, {s(S_T)} offen")
    A(f"buffer_load_ushort {v(t)}, {v(t+2)}, {s(C.S_AUX,4)}, {s(S_T)} offen offset:32")
    def h_init():
        labs = by_wave("cc"); Lj = A.newlabel("ccj")
        for w in range(4):
            A.label(labs[w]); C.chain_consts(A, w)
            if w < 3: A(f"s_branch {Lj}")
        A.label(Lj)
        for i in range(8): A(C.zero2(C.V_VB + 2*i))
        A(f"v_mov_b64 {v(t+4,2)}, -1")
        A(f"v_mov_b64 {v(t+6,2)}, -1")
        A(f"v_lshl_or_b32 {v(C.V_T0)}, {v(t)}, 16, {v(t+3)}")
        for so in (C.S_PLD, C.S_PCL):
            A(f"global_store_dwordx4 {v(C.V_L16)}, {v(t+4,4)}, {s(so,2)} sc1")
            A(f"global_store_dwordx4 {v(C.V_L16)}, {v(t+4,4)}, {s(so,2)} offset:1024 sc1")
        A(C.gst1(C.V_PUB, t+4, C.S_MPUB, 0, "sc1"))
        A(f"s_xor_b32 {s(C.S_MPUB)}, {s(C.S_MPUB)}, {C.MEM_SZ}")
        A(C.gst1(C.V_PUB, C.V_T0, C.S_MPUB, 0, "sc1"))
        return 6
    def h_arrive():
        Ls = A.newlabel("arr")
        A(f"s_cmp_eq_u32 {s(S_W)}, 0")
        A(f"s_cbranch_scc0 {Ls}")
        A(f"v_mov_b32 {v(C.V_T0)}, 0x10000")
        A("s_mov_b64 exec, 1")
        A(f"global_atomic_add {v(VZ)}, {v(C.V_T0)}, {s(S_DBG,2)} offset:{D_ARR}")
        A("s_mov_b64 exec, -1")
        A.label(Ls)
        return 0
    def h_warm():
        for so in (C.S_PLD, C.S_PCL):
            A(C.gld4(t, so, 0)); A(C.gld4(t, so, 1024))
        A(f"s_xor_b32 {s(C.S_MLD)}, {s(C.S_MLD)}, {C.MEM_SZ}")
        A(C.gld4(t, C.S_MLD, 0)); A(C.gld4(t, C.S_MLD, 1024))
        A(f"s_xor_b32 {s(C.S_MLD)}, {s(C.S_MLD)}, {C.MEM_SZ}")
        A(C.gld4(t, C.S_MLD, 0)); A(C.gld4(t, C.S_MLD, 1024))
        return 8
    C.emit_loader(A, {0: h_init, 8: h_arrive, 25: h_warm}, cfg["nt"])
    if diag: A("s_memrealtime s[22:23]")
    A("s_waitcnt vmcnt(0) lgkmcnt(0)")
    C.chain_consts2(A, 0, cfg)
    A(f"s_xor_b32 {s(C.S_PLD)}, {s(C.S_PLD)}, {PART_SZ}")
    A(f"s_mov_b32 {s(S_T)}, {(32 << 16) + cfg['narr']}")
    spin(A, f"global_load_dword {v(C.V_T0)}, {v(VZ)}, {s(S_DBG,2)} offset:{D_ARR} sc1",
         f"v_cmp_ne_u32 vcc, {s(S_T)}, {v(C.V_T0)}", 0)
    A(f"global_load_dword {v(C.V_T1)}, {v(VZ)}, {s(S_DBG,2)} offset:{D_TK[0]} sc1")
    if cfg["flags"]:
        spin(A, f"global_load_dword {v(C.V_T0)}, {v(VZ)}, {s(C.S_FQ,2)} sc1", f"v_cmp_eq_u32 vcc, 0, {v(C.V_T0)}", 0)
    labs = by_wave("chain_w")
    for w in range(4):
        A.label(labs[w])
        for x in C.dma_k(w) + C.dma_v(w): A(x)
        if w == cfg["fw"] and cfg["flags"]:
            A(f"s_mov_b32 m0, {C.L_FL}"); A("s_nop 0")
            A(f"global_load_lds_dword {v(C.V_L4)}, {s(C.S_FQ,2)} sc1")
        C.park_first(A, w)
        ds, dsv, va = C.chores(w)
        for x in ds + va: A(x)
        for x in C.adv(C.S_KV, 16384) + C.adv(C.S_KV2, 16384): A(x)
        A("s_waitcnt vmcnt(0) lgkmcnt(0)")
        A(f"v_readfirstlane_b32 s3, {v(C.V_T1)}")
        if diag:
            for i in range(8): A(f"s_mov_b32 {s(C.S_ACC+i)}, 0")
            if cfg.get('stamps') == 1:
                for i in range(8): A(f"s_memtime {s(C.S_TM0+2*i,2)}\ns_waitcnt lgkmcnt(0)")
            if cfg.get("stamps") == 2:
                A(f"s_lshl_b32 {s(S_T)}, {s(S_H)}, 16")
                A(f"s_add_u32 {s(S_T)}, {s(S_T)}, {WS_STAT + 0x100000 + w*16384}")
                A(f"s_add_u32 {s(C.S_ACC)}, {s(S_WS)}, {s(S_T)}")
                A(f"s_addc_u32 {s(C.S_ACC+1)}, {s(S_WS+1)}, 0")
                for i in range(16): A(f"s_mov_b32 {s(C.S_TM0+i)}, 0")
            A(f"s_memtime s[66:67]")
            A(f"s_memrealtime s[98:99]")
            A("s_waitcnt lgkmcnt(0)")
        Lslow, Ldone = A.newlabel("slow"), A.newlabel("done")
        A(f"s_cmp_lt_u32 s3, {33 if cfg.get('forceslow') else 32}")
        A(f"s_cbranch_scc1 {Lslow}")
        A(".p2align 6")
        C.emit_step_loop(A, w, cfg, "")
        A(f"s_branch {Ldone}")
        A.label(Lslow)
        if not cfg.get("noslow"): C.emit_step_loop(A, w, cfg, "sc1")
        A.label(Ldone)
        ppre, prd, pst = C.pub_ops(w, C.V_H + 4)
        A(ppre); A(prd)
        for x in C.adv(C.S_KMO, 4096): A(x)
        A(pst[0]); A(pst[1]); A("s_waitcnt lgkmcnt(0)"); A(pst[2]); A(pst[3])
        if cfg["wb"] and w == 0:
            A("s_waitcnt vmcnt(0)"); A("buffer_wbl2 sc1"); A("s_waitcnt vmcnt(0)")
        if diag:
            A(f"s_memtime s[68:69]")
            A(f"s_memrealtime s[100:101]")
            A("s_waitcnt lgkmcnt(0)")
            A(f"s_sub_u32 {s(S_T)}, s68, s66")
            vals = [s(S_T), s(C.S_CNT), s(C.S_CNT+1), "s97", "s96", "s98", "s100", "s22"] + [s(C.S_ACC+i) for i in range(8)]
            for i, x in enumerate(vals): A(f"v_mov_b32 v{16+i}, {x}")
            A(f"s_lshl_b32 {s(S_T)}, {s(S_H)}, 8")
            A(f"s_add_u32 {s(S_T)}, {s(S_T)}, {WS_STAT + w*64}")
            A("v_mov_b32 v40, 0")
            for i in range(4): A(f"buffer_store_dwordx4 v[{16+4*i}:{19+4*i}], v40, {s(S_WS,4)}, {s(S_T)} offen offset:{16*i}")
        A("s_endpgm")

def build(cfg):
    A = Asm()
    K = NAME + "_kernel"
    A.label(K)
    A("s_cmp_lt_u32 s2, 256")
    A("s_cbranch_scc1 L_go")
    A("s_endpgm")
    A.label("L_go")
    A(f"s_load_dwordx4 s[80:83], s[0:1], {KA['dbg']}")
    if cfg.get("diag"): A("s_memrealtime s[96:97]")
    A("s_getreg_b32 s3, hwreg(HW_REG_XCC_ID, 0, 4)")
    if cfg.get("fakexcc"): A(cfg["fakexcc"])
    A("v_lshrrev_b32 v1, 6, v0")
    A("v_and_b32 v0, 63, v0")
    A(f"v_readfirstlane_b32 {s(S_W)}, v1")
    A("v_lshlrev_b32 v4, 2, v0")
    A("v_lshlrev_b32 v0, 4, v0")
    A("v_mov_b32 v3, 0")
    A(f"s_mov_b64 {s(S_ALIVE,2)}, -1")
    A(f"s_mov_b32 {s(S_BUD)}, {BUDGET}")
    A("s_waitcnt lgkmcnt(0)")
    srd(A, S_DBG, 80, 256); srd(A, S_WS, 82, WS_SIZE)
    A(f"s_cmp_eq_u32 {s(S_W)}, 0")
    A("s_cbranch_scc0 L_tk")
    A("s_lshl_b32 s70, s3, 2")
    A("s_cmp_lt_u32 s3, 4")
    A("s_cselect_b32 s71, 60, 112")
    A("s_add_u32 s70, s70, s71")
    A("s_cmp_eq_u32 s3, 0")
    A("s_cselect_b32 s70, 0, s70")
    A("s_cmp_lt_u32 s3, 8")
    A("s_cselect_b32 s70, s70, 252")
    A("v_mov_b32 v2, 1")
    A("v_mov_b32 v5, s70")
    A("s_lshl_b32 s71, s2, 8")
    A("s_mov_b64 exec, 1")
    A(f"global_atomic_add v2, v5, v2, {s(S_DBG,2)} sc0")
    A("s_mov_b64 exec, -1")
    A(f"buffer_store_dword v3, v4, {s(S_WS,4)}, s71 offen sc1")
    A("s_waitcnt vmcnt(1)")
    A("v_readfirstlane_b32 s72, v2")
    A("s_cmp_lt_u32 s3, 8")
    A("s_cselect_b32 s72, s72, 32")
    A("s_lshl_b32 s73, s3, 5")
    A("s_add_u32 s73, s73, s72")
    A("s_cmp_lt_u32 s72, 32")
    A("s_cbranch_scc1 L_have")
    A("s_waitcnt vmcnt(0)")
    arrive(A, 3, 2)
    A("v_mov_b32 v2, 1")
    A("s_mov_b64 exec, 1")
    A(f"global_atomic_add v2, v3, v2, {s(S_DBG,2)} offset:{D_OVF} sc0")
    A("s_mov_b64 exec, -1")
    A("s_waitcnt vmcnt(0)")
    A("v_readfirstlane_b32 s72, v2")
    A(f"s_movk_i32 {s(S_T)}, {cfg['narr']}")
    spin(A, f"global_load_ushort v2, v3, {s(S_DBG,2)} offset:{D_ARR} sc1", f"v_cmp_gt_u32 vcc, {s(S_T)}, v2")
    A(f"global_load_dword v2, v4, {s(S_DBG,2)} sc1")
    A("s_mov_b32 s73, 255")
    A("s_waitcnt vmcnt(0)")
    for x in range(8):
        Ln = A.newlabel("ov")
        A(f"v_readlane_b32 s74, v2, {D_TK[x] // 4}")
        A("s_min_u32 s74, s74, 32")
        A("s_add_u32 s72, s72, s74")
        A("s_cmp_lt_u32 s72, 32")
        A(f"s_cbranch_scc0 {Ln}")
        A(f"s_add_u32 s73, s72, {32 * x}")
        A("s_branch L_have2")
        A.label(Ln)
        A("s_sub_u32 s72, s72, 32")
    A("s_branch L_have2")
    A.label("L_have")
    A("v_mov_b32 v2, s73")
    A("ds_write_b32 v3, v2")
    A("s_waitcnt lgkmcnt(0)")
    A("s_barrier")
    A("s_waitcnt vmcnt(0)")
    arrive(A, 3, 2)
    A("s_branch L_tk2")
    A.label("L_have2")
    A("v_mov_b32 v2, s73")
    A("ds_write_b32 v3, v2")
    A("s_waitcnt lgkmcnt(0)")
    A.label("L_tk")
    A("s_barrier")
    A.label("L_tk2")
    A("ds_read_b32 v2, v3")
    A("s_waitcnt lgkmcnt(0)")
    A(f"v_readfirstlane_b32 {s(S_H)}, v2")
    A("s_barrier")
    if cfg.get("diag"):
        A(f"s_lshl_b32 s95, {s(S_H)}, 6"); A(f"s_lshl_b32 s94, {s(S_W)}, 4"); A("s_add_u32 s95, s95, s94")
        A("s_memrealtime s[98:99]"); A("s_waitcnt lgkmcnt(0)"); A("s_mov_b32 s100, s98"); A("s_mov_b32 s97, s98")
    roles = [(32, "chain"), (96, "qkv"), (32, "att"), (64, "b4"), (32, "a")]
    for n, nm in roles[:-1]:
        Ln = A.newlabel("rl")
        A(f"s_cmp_lt_u32 {s(S_H)}, {n}")
        A(f"s_cbranch_scc0 {Ln}")
        A(f"s_branch L_role_{nm}")
        A.label(Ln)
        A(f"s_sub_u32 {s(S_H)}, {s(S_H)}, {n}")
    A(f"s_and_b32 {s(S_H)}, {s(S_H)}, 31")
    en = cfg.get("roles", "chain qkv att b4 a").split()
    for nm, fn in (("a", lambda A: bg.role_a(A, cfg)), ("b4", lambda A: bg.role_b4(A, cfg)), ("att", bg.role_att), ("qkv", bg.role_qkv), ("chain", lambda A: chain_role(A, cfg))):
        A.label(f"L_role_{nm}")
        k0 = len(A.lines)
        if nm in en: fn(A)
        else: A("s_endpgm")
        if cfg.get("diag") and nm != "chain":
            out = []
            for ln in A.lines[k0:]:
                if ln.startswith(";mark"):
                    out += [f"s_memrealtime s[{ln.split()[1]}:{int(ln.split()[1])+1}]", "s_waitcnt lgkmcnt(0)"]
                elif ln == "s_endpgm":
                    out += ["s_waitcnt vmcnt(0)", "s_memrealtime s[54:55]", "s_waitcnt lgkmcnt(0)", "v_mov_b32 v16, s96", "v_mov_b32 v17, s54",
                            "v_mov_b32 v18, s98", "v_mov_b32 v19, s100", "v_mov_b32 v20, s95", f"v_add_u32 v20, {WS_STAT + 0x10000}, v20",
                            f"buffer_store_dwordx4 v[16:19], v20, {s(S_WS,4)}, 0 offen",
                            ln]
                else: out.append(ln)
            A.lines[k0:] = out
    errs = check_hazards(A.lines)
    head = f"""; @launch grid=(256,1,1) block=(256,1,1) lds=163840
.amdgcn_target "amdgcn-amd-amdhsa--gfx950"
.text
.globl {K}
.p2align 8
.type {K},@function
"""
    tail = f""".section .rodata,"a"
.p2align 6
.amdhsa_kernel {K}
  .amdhsa_next_free_vgpr 512
  .amdhsa_next_free_sgpr 102
  .amdhsa_accum_offset 256
  .amdhsa_group_segment_fixed_size 0
  .amdhsa_kernarg_size 112
  .amdhsa_user_sgpr_count 2
  .amdhsa_user_sgpr_kernarg_segment_ptr 1
  .amdhsa_system_sgpr_workgroup_id_x 1
.end_amdhsa_kernel
"""
    return head + A.text() + tail, errs

DEF = {"d1": [1, 1, 2, 2], "e1": [[], [], [], []], "pre1": [37, 45, 53, 61], "gap1": [0, 0, 16, 8], "u1": [0, 0, 0, 0], "f1": [9, 9, 9, 9], "nb": [0, 0, 0, 0], "na": [2, 2, 2, 2], "pre2a": [12, 28, 0, 0], "pre2b": [10, 11, 12, 13], "gap2": [30, 30, 30, 30], "f2": [2, 2, 2, 2], "ba": 1, "defer": [0, 0, 0, 0], "bc": [5, 5, 5, 6], "bk": 22, "bq": 35, "nwo0": 4, "bcds": 0, "pclr": 16, "sclr": 1, "pv": 7, "ppub": 8, "skv": 4, "b1": 49, "sp": 0, "sp3": 0,
       "cw": -1, "pw_": 3, "hy": 4, "hs": 30, "hn": 3, "hg": 9, "fw": 0, "flags": 1, "narr": 256, "nt": "", "wb": 0, "outst": "", "diag": 0}
if __name__ == "__main__":
    txt, errs = build(DEF)
    open(sys.argv[1] if len(sys.argv) > 1 else "k.s", "w").write(txt)
    print("hazards:", len(errs))
    for e in errs: print(e)
```
